```python
import torch

def _softmax(x, axis=-1):
    return torch.softmax(x, dim=axis)

def _gelu(x):
    return torch.nn.functional.gelu(x, approximate='tanh')

def _silu(x):
    return torch.nn.functional.silu(x)

def _sigmoid(x):
    return torch.sigmoid(x)

def _layernorm(x, axis=-1, eps=1e-05):
    m = x.mean(dim=axis, keepdim=True)
    v = x.var(dim=axis, keepdim=True, unbiased=False)
    return (x - m) / torch.sqrt(v + eps)

def _scatter_add(tgt, idx, src, axis=0):
    return tgt.clone().index_add_(axis, idx, src)

def _segment_sum(src, seg, n):
    out = torch.zeros((n,) + src.shape[1:], dtype=src.dtype)
    return out.index_add_(0, seg, src)

def _pad(x, pw):
    flat = tuple((v for pair in reversed(pw) for v in pair))
    return torch.nn.functional.pad(x, flat)
kernel_name = 'adaLN_cond__mha_block_cached__geglu_ffn__decode'

def setup_inputs():

    _w = lambda a: (lambda t: t.to(torch.bfloat16) if t.is_floating_point() else t)(torch.as_tensor(a))

    def _A_setup():
        B, Sq, D = (1, 1, 512)
        H, Sk, Dh = (32, 65536, 128)
        return {'x': _w((lambda *s: torch.randn(*s, dtype=torch.bfloat16) * 0.1)(B, Sq, D)), 'k_cache': _w((lambda *s: torch.randn(*s, dtype=torch.bfloat16) * 0.8)(B, H, Sk, Dh)), 'v_cache': _w((lambda *s: torch.randn(*s, dtype=torch.bfloat16) * 1.6)(B, H, Sk, Dh)), 'wq': _w((lambda *s: torch.randn(*s, dtype=torch.bfloat16) * 0.8)(D, H * Dh) * D ** (-0.5)), 'wo': _w((lambda *s: torch.randn(*s, dtype=torch.bfloat16) * 1.6)(H * Dh, D) * (H * Dh) ** (-0.5))}
    _A_in = _A_setup()

    def _B_setup():
        B, S, D, F = (1, 1, 512, 1792)
        return {'x': _w((lambda *s: torch.randn(*s, dtype=torch.bfloat16) * 0.1)(B, S, D)), 'w_gate': _w((lambda *s: torch.randn(*s, dtype=torch.bfloat16) * 0.4)(D, F)), 'w_up': _w((lambda *s: torch.randn(*s, dtype=torch.bfloat16) * 0.4)(D, F)), 'w_down': _w((lambda *s: torch.randn(*s, dtype=torch.bfloat16) * 0.4)(F, D))}
    _B_in = _B_setup()
    return {'A_x': _A_in['x'], 'A_k_cache': _A_in['k_cache'], 'A_v_cache': _A_in['v_cache'], 'A_wq': _A_in['wq'], 'A_wo': _A_in['wo'], 'B_x': _B_in['x'], 'B_w_gate': _B_in['w_gate'], 'B_w_up': _B_in['w_up'], 'B_w_down': _B_in['w_down'], 'c': _w((lambda *s: torch.randn(*s, dtype=torch.bfloat16) * 0.4)(1, 512) * 8.0), 'w_mod': _w((lambda *s: torch.randn(*s, dtype=torch.bfloat16) * 0.4)(512, 6 * 512) * 512 ** (-0.5) * 8.0)}

def reference(A_x, A_k_cache, A_v_cache, A_wq, A_wo, B_x, B_w_gate, B_w_up, B_w_down, c, w_mod):

    def _A_ref(x, k_cache, v_cache, wq, wo):
        B, Sq, D = x.shape
        H, Dh = (32, 128)
        q = (lambda x, *d: x.permute(*d))((x @ wq).reshape(B, Sq, H, Dh), 0, 2, 1, 3)
        scores = torch.einsum('bhqd,bhkd->bhqk', q, k_cache) * Dh ** (-0.5)
        p = _softmax(scores, axis=-1)
        o = torch.einsum('bhqk,bhkd->bhqd', p, v_cache)
        return (lambda x, *d: x.permute(*d))(o, 0, 2, 1, 3).reshape(B, Sq, H * Dh) @ wo

    def _B_ref(x, w_gate, w_up, w_down):
        return _gelu(x @ w_gate) * (x @ w_up) @ w_down
    x = A_x
    mod = (_silu(c) @ w_mod).reshape(c.shape[0], 6, 1, -1)
    sa, ca, ga, sb, cb, gb = (mod[:, 0].clone(), mod[:, 1].clone(), mod[:, 2].clone(), mod[:, 3].clone(), mod[:, 4].clone(), mod[:, 5].clone())
    h = _layernorm(x, axis=-1) * (1 + ca) + sa
    x = x + ga * _A_ref(h, A_k_cache, A_v_cache, A_wq, A_wo)
    h = _layernorm(x, axis=-1) * (1 + cb) + sb
    x = x + gb * _B_ref(h, B_w_gate, B_w_up, B_w_down)
    return x
```

```python
import sys, json
from build import build
from haz import fix
KN = "adaLN_cond__mha_block_cached__geglu_ffn__decode_kernel"
HDR = open("adaLN_cond__mha_block_cached__geglu_ffn__decode.s.ref").read().split("; Override")[0]
EP = 0x9000
CS = 0x5100
MOD, Q, ML, H2, H1, H3, TK, SC = 0, 0x4000, 0x8000, 0xA000, 0x10000, 0x30000, 0x80000, 0x100000
L_M, L_WM, L_LP, L_Z, L_Q, L_RA, L_RB, L_RC, L_RD, L_ST, L_RF, L_X1, L_OP, L_SC = 0x40,0x50,0x60,0x80,0x100,0x400,0x400,0x400,0x400,0x200,0x400,0xC00,0x1400,0x2000
F_MOD, F_QR, F_ARR, F_Q, F_AD, F_HB, F_ML, F_CL, F_PF = 0,4,8,12,16,20,24,28,32
D = "row_mask:0xf bank_mask:0xf"
def gen(name, S=56, P=6, T1=2, TH=10**6, ts=False, wfl="nt", THR=4, am=1, dry=1, late=0, early=0, qs=0, nm=1, nh=1, sm=0, s1=0, s2=0, s3=0, hold=0, al=0, kp=0, hg=0, sy=0, rot=0, wc=0, hr=0, d1=1, d2=1, d3=1, pr=0, stg=6, tch=0, sp=0, lp=0, RK=0, out=None):
    L = []; e = L.append; lab = [0]
    NT = 512-8*S; ND = 4*NT + (32 if RK else 0); assert wc == 1 and RK <= 8 and not qs; L_DY = L_SC + (4*S*128+4095)//4096*4096; lds = L_DY + ND*128
    def nl(p): lab[0] += 1; return f"L_{p}{lab[0]}"
    def TS(k):
        if ts: e(f"s_memrealtime s[{80+2*k}:{81+2*k}]")
    def TSW(ks):
        if not ts: return
        e("s_waitcnt lgkmcnt(0)\ns_mov_b64 exec, 1\ns_lshl_b32 s3, s2, 6\ns_add_u32 s3, s3, 0x4000000\nv_mov_b32 v0, 0")
        for k in ks: e(f"v_mov_b32 v2, s{80+2*k}\nv_mov_b32 v3, s{81+2*k}\nbuffer_store_dwordx2 v[2:3], v0, s[16:19], s3 offen offset:{8*k}\ns_waitcnt vmcnt(0)")
    def srd(d, b, size): e(f"s_mov_b32 s{d}, s{b}\ns_mov_b32 s{d+1}, s{b+1}\ns_mov_b32 s{d+2}, {size}\ns_mov_b32 s{d+3}, 0x20000")
    def retry(l, sl=0):
        if sl: e(f"s_sleep {sl}")
        e(f"s_sub_u32 s79, s79, 1\ns_cbranch_scc0 {l}\ns_mov_b32 s79, 0")
    def waitflag(off, val, t, sl=1):
        l = nl("wf"); d = nl("wd")
        e(f"v_mov_b32 v{t}, 0\n{l}:\nds_read_b32 v{t+1}, v{t} offset:{off}\ns_waitcnt lgkmcnt(0)\nv_readfirstlane_b32 s3, v{t+1}\ns_cmp_ge_u32 s3, {val}\ns_cbranch_scc1 {d}")
        retry(l, sl); e(f"{d}:")
    def addflag(off, t):
        e(f"s_mov_b64 exec, 1\nv_mov_b32 v{t}, 0\nv_mov_b32 v{t+1}, 1\nds_add_u32 v{t}, v{t+1} offset:{off}\ns_mov_b64 exec, -1")
    def poll(loads, regs, t, sl=0):
        l = nl("p"); d = nl("pd"); e(f"{l}:")
        for x in loads: e(x)
        e("s_waitcnt vmcnt(0)")
        r = list(regs); e(f"v_max_u32 v{t}, v{r[0]}, v{r[1]}")
        for i in range(2, len(r), 2): e(f"v_max3_u32 v{t}, v{r[i]}, v{r[i+1]}, v{t}")
        e(f"v_cmp_eq_u32 vcc, -1, v{t}\ns_cbranch_vccz {d}"); retry(l, sl); e(f"{d}:")
    def ppoll(loads, regs, t, dep, probe=0):
        r = list(regs)
        if probe:
            l = nl("q"); d = nl("qd"); e(f"{l}:\n{loads[0]}\ns_waitcnt vmcnt(0)\nv_cmp_ne_u32 vcc, -1, v{r[0]}\ns_cbranch_vccnz {d}"); retry(l); e(f"{d}:")
        for k in range(dep-1):
            for x in loads: e(x)
            e(f"s_sleep {stg}")
        l = nl("p"); d = nl("pd"); e(f"{l}:")
        for x in loads: e(x)
        e(f"s_waitcnt vmcnt({len(loads)*(dep-1)})\nv_max_u32 v{t}, v{r[0]}, v{r[1]}")
        for i in range(2, len(r), 2): e(f"v_max3_u32 v{t}, v{r[i]}, v{r[i+1]}, v{t}")
        e(f"v_cmp_eq_u32 vcc, -1, v{t}\ns_cbranch_vccz {d}"); retry(l); e(f"{d}:")
    def pollt(loads, regs, t, sl=0):
        l = nl("p"); d = nl("pd"); e(f"{l}:")
        for x in loads: e(x)
        e("s_waitcnt vmcnt(0)")
        r = list(regs)[1::2]
        for x in r: e(f"v_xor_b32 v{x}, s46, v{x}")
        e(f"v_or_b32 v{t}, v{r[0]}, v{r[1]}")
        for i in range(2, len(r), 2): e(f"v_or3_b32 v{t}, v{r[i]}, v{r[i+1]}, v{t}")
        e(f"v_cmp_ne_u32 vcc, 0, v{t}\ns_cbranch_vccz {d}"); retry(l, sl); e(f"{d}:")
    def untag(regs):
        r = list(regs)[0::2]
        for x in r: e(f"v_and_b32 v{x+1}, s78, v{x}")
        for x in r: e(f"v_lshlrev_b32 v{x}, 16, v{x}")
    def rb(*rs):
        for r in rs: e(f"v_cvt_pk_bf16_f32 v{r}, v{r}, v{r}")
        for r in rs: e(f"v_lshlrev_b32 v{r}, 16, v{r}")
    def rows(op, rs, t):
        for sw in (16, 32):
            for i, r in enumerate(rs): e(f"v_mov_b32 v{t+i}, v{r}")
            for i, r in enumerate(rs): e(f"v_permlane{sw}_swap_b32 v{r}, v{t+i}")
            for i, r in enumerate(rs): e(f"{op} v{r}, v{r}, v{t+i}")
    def allred(op, rs, t, rors=(8,4,2,1)):
        for k in rors:
            for r in rs: e(f"{op}_dpp v{r}, v{r}, v{r} row_ror:{k} {D}")
        rows(op, rs, t)
    def tred(ys):
        for y in ys:
            for p in range(0,8,2): e(f"v_add_f32_dpp v{y+p}, v{y+p}, v{y+p} row_ror:8 row_mask:0xf bank_mask:0x3")
            for p in range(0,8,2): e(f"v_add_f32_dpp v{y+p}, v{y+p+1}, v{y+p+1} row_ror:8 row_mask:0xf bank_mask:0xc")
        for y in ys:
            for p in (0,4): e(f"v_add_f32_dpp v{y+p}, v{y+p}, v{y+p} row_shl:4 row_mask:0xf bank_mask:0x5")
            for p in (0,4): e(f"v_add_f32_dpp v{y+p}, v{y+p+2}, v{y+p+2} row_shr:4 row_mask:0xf bank_mask:0xa")
        for y in ys:
            for p in (0,4): e(f"v_add_f32_dpp v{y+p}, v{y+p}, v{y+p} quad_perm:[2,3,0,1] {D}")
        for y in ys: e(f"v_cndmask_b32 v{y}, v{y}, v{y+4}, s[76:77]")
    def unpack(dst, src, n):
        for i in range(n): e(f"v_lshlrev_b32 v{dst+2*i}, 16, v{src+i}\nv_and_b32 v{dst+2*i+1}, s78, v{src+i}")
    e(HDR + f"; @launch grid=(256,1,1) block=(512,1,1) lds={lds}")
    e(f'.amdgcn_target "amdgcn-amd-amdhsa--gfx950"\n.text\n.globl {KN}\n.p2align 8\n.type {KN},@function\n{KN}:')
    e("s_cmp_ge_u32 s2, 256\ns_cbranch_scc1 L_end"); TS(0)
    e("s_load_dwordx16 s[48:63], s[0:1], 0\ns_load_dwordx8 s[64:71], s[0:1], 64\ns_load_dwordx4 s[72:75], s[0:1], 96")
    e("v_lshrrev_b32 v1, 6, v0\nv_lshlrev_b32 v2, 2, v0\nv_mov_b32 v3, 0\nv_readfirstlane_b32 s31, v1\nds_write_b32 v2, v3")
    e("s_lshr_b32 s32, s2, 3\ns_and_b32 s33, s2, 7")
    e("s_add_u32 s35, s32, s33\ns_and_b32 s35, s35, 7")
    e("s_mov_b32 s76, 0xcccccccc\ns_mov_b32 s77, 0xcccccccc\ns_mov_b32 s78, 0xffff0000\ns_mov_b32 s79, 100000\ns_mov_b32 s27, 0x3fb8aa3b")
    e("v_and_b32 v1, 63, v0\ns_waitcnt lgkmcnt(0)")
    srd(16, 74, 0x8000000 if ts else 0x400000)
    e("s_cmp_lt_u32 s31, 4\ns_cbranch_scc1 L_stream")
    from gen2 import helper
    helper(locals())
    e("s_endpgm\nL_stream:")
    e("v_lshrrev_b32 v3, 1, v1\nv_lshlrev_b32 v3, 2, v3\nv_lshlrev_b32 v1, 4, v1\nv_add_u32 v2, 4096, v1")
    e("s_lshl_b32 s3, s32, 24\ns_add_u32 s8, s50, s3\ns_addc_u32 s9, s51, 0\ns_mov_b32 s10, 0x1000000\ns_mov_b32 s11, 0x20000")
    e("s_add_u32 s12, s52, s3\ns_addc_u32 s13, s53, 0\ns_mov_b32 s14, 0x1000000\ns_mov_b32 s15, 0x20000")
    e(f"s_mul_i32 s3, s32, 8704\ns_add_u32 s3, s3, {TK}\ns_mov_b32 s30, s3\ns_mul_i32 s4, s31, {1088*wc}\ns_add_u32 s3, s3, s4\ns_add_u32 s44, s74, s3\ns_addc_u32 s45, s75, 0")
    e(f"s_mul_i32 s3, s32, {ND*128}\ns_add_u32 s3, s3, {SC}\ns_add_u32 s20, s74, s3\ns_addc_u32 s21, s75, 0\ns_mov_b32 s22, {ND*128}\ns_mov_b32 s23, 0x20000")
    if qs: e(f"s_load_dword s46, s[74:75], {EP}")
    e("s_barrier\ns_cmp_lg_u32 s31, 0\ns_cbranch_scc1 L_noclr")
    for j in range(4): e(f"v_mov_b32 v{4+j}, -1")
    e(f"v_mov_b32 v8, 0\nv_lshrrev_b32 v9, 6, v1\nv_mul_u32_u24 v9, {CS}, v9\nv_and_b32 v10, 48, v1\nv_add_u32 v9, v9, v10\ns_mov_b32 exec_lo, {(1<<(4*nh))-1}\ns_mov_b32 exec_hi, 0")
    for b in (H2,): e(f"s_lshl_b32 s3, s2, 6\ns_add_u32 s3, s3, {b}\nbuffer_store_dwordx4 v[4:7], v9, s[16:19], s3 offen sc1")
    e(f"s_mov_b64 exec, 1\ns_lshl_b32 s3, s2, 3\ns_add_u32 s3, s3, {ML}\nbuffer_store_dwordx2 v[4:5], v1, s[16:19], s3 offen sc1")
    e("s_cmp_lg_u32 s33, 0\ns_cbranch_scc1 L_notk\ns_mov_b64 exec, 255\nv_mul_u32_u24 v10, 68, v1\nbuffer_store_dword v8, v10, s[16:19], s30 offen sc1\nL_notk:")
    e(f"s_mov_b32 exec_lo, -1\ns_lshl_b32 s3, s2, 9\ns_add_u32 s3, s3, {H1}\nbuffer_store_dwordx4 v[4:7], v1, s[16:19], s3 offen sc1\ns_mov_b64 exec, -1")
    e(f"s_lshl_b32 s3, s2, 10\ns_add_u32 s3, s3, {H3}\nbuffer_store_dwordx4 v[4:7], v1, s[16:19], s3 offen sc1")
    e("L_noclr:")
    e("s_lshl_b32 s24, s33, 2\ns_add_u32 s24, s24, s31\ns_lshl_b32 s24, s24, 13\ns_mov_b32 s36, s24")
    if isinstance(am, str):
        BT = ["ab0123456789".index(c)+8 for c in ("ab" + am.replace(" ", ""))[-12:]]; assert sorted(BT) == list(range(8, 20))
        e(f"v_and_b32 v2, 0xff, v1\nv_bfe_u32 v4, v1, 8, 1\nv_lshl_add_u32 v2, v4, {BT[0]}, v2\nv_bfe_u32 v4, v1, 9, 1\nv_lshl_add_u32 v2, v4, {BT[1]}, v2")
    def half(base, sr, h, so):
        if am == 1:
            e(f"s_and_b32 s47, s{so}, 0x6000\ns_lshr_b32 s3, s47, 3\ns_xor_b32 s47, s47, s{so}\ns_add_u32 s47, s47, s3")
            for i in range(4*h, 4*h+4): e(f"s_add_u32 s3, s47, {4096*i}\nbuffer_load_dwordx4 v[{base+4*i}:{base+4*i+3}], v1, s[{sr}:{sr+3}], s3 offen nt")
            return
        if isinstance(am, str):
            bt = BT[2:]
            if h == 0:
                if hr: e(f"s_mul_i32 s7, s32, {hr*0x40000}\ns_add_u32 s7, s7, s{so}\ns_and_b32 s7, s7, 0xffffff\ns_and_b32 s3, s{so}, 0x1000000\ns_or_b32 s7, s7, s3"); so = 7
                rs, rt = min(bt[5:8]) < 15, min(bt[8:10]) < 15
                e(f"s_lshr_b32 s4, s{so}, 18\ns_lshr_b32 s5, s{so}, 15\ns_and_b32 s47, s{so}, 0xfff00000")
                if rs and not rot & 1: e("s_add_u32 s5, s5, s4")
                if rs and not rot & 2: e("s_add_u32 s5, s5, s32")
                if rt:
                    e("s_add_u32 s6, s4, s5" + ("" if rs else "\ns_add_u32 s6, s6, s32"))
                if rot & 12: e(f"s_lshr_b32 s7, s{so}, {18 if rot & 4 else 19}\ns_lshl_b32 s7, s7, 13\ns_add_u32 s7, s7, s{so}")
                for reg, sh, bits in ((7 if rot & 12 else so, 13, bt[3:5]), (5, 0, bt[5:8]), (4, 0, bt[8:10])):
                    k = 0
                    while k < len(bits):
                        n = 1
                        while k+n < len(bits) and bits[k+n] == bits[k]+n: n += 1
                        r = 6 if reg == 4 and bits[k] < 15 else reg
                        e(f"s_bfe_u32 s3, s{r}, {hex((n << 16) + sh + k)}\ns_lshl_b32 s3, s3, {bits[k]}\ns_or_b32 s47, s47, s3"); k += n
            for i in range(4*h, 4*h+4):
                o = sum(((i >> k) & 1) << bt[k] for k in range(3))
                e(f"s_add_u32 s3, s47, {o}\nbuffer_load_dwordx4 v[{base+4*i}:{base+4*i+3}], v2, s[{sr}:{sr+3}], s3 offen nt")
            return
        if am in (8, 9):
            e(f"s_lshr_b32 s3, s{so}, 18\ns_lshr_b32 s47, s{so}, 15\ns_add_u32 s3, s3, s47\ns_add_u32 s3, s3, s32")
            if am == 8: e(f"s_and_b32 s3, s3, 3\ns_lshl_b32 s3, s3, 10\ns_and_b32 s47, s{so}, 0x3e000\ns_lshl2_add_u32 s3, s47, s3\ns_and_b32 s47, s{so}, 0xfff00000\ns_add_u32 s47, s47, s3")
            else: e(f"s_and_b32 s3, s3, 1\ns_lshl_b32 s3, s3, 11\ns_and_b32 s47, s{so}, 0x3c000\ns_lshl1_add_u32 s3, s47, s3\ns_bfe_u32 s47, s{so}, 0x1000d\ns_lshl_b32 s47, s47, 10\ns_add_u32 s3, s3, s47\ns_and_b32 s47, s{so}, 0xfff80000\ns_add_u32 s47, s47, s3")
            for i in range(4*h, 4*h+4): e(f"s_add_u32 s3, s47, {4096*i}\nbuffer_load_dwordx4 v[{base+4*i}:{base+4*i+3}], v1, s[{sr}:{sr+3}], s3 offen nt")
            return
        if am >= 5:
            lg = {5: 3, 6: 2, 7: 1}[am]; w = 0x8000 << lg
            e(f"s_lshr_b32 s3, s{so}, 18\ns_add_u32 s3, s3, s32\ns_lshl_b32 s3, s3, 12\ns_lshr_b32 s47, s{so}, {lg}\ns_add_u32 s3, s3, s47\ns_and_b32 s3, s3, 0x7fff\ns_and_b32 s47, s{so}, {hex(0xffffffff ^ (w-1))}\ns_add_u32 s47, s47, s3")
            for i in range(4*h, 4*h+4):
                if i % (8 >> lg) == 0 or i == 4*h: e(f"s_add_u32 s3, s47, {0x8000*(i >> (3-lg))}")
                e(f"buffer_load_dwordx4 v[{base+4*i}:{base+4*i+3}], v1, s[{sr}:{sr+3}], s3 offen offset:{1024*(i % (8 >> lg))} nt")
            return
        if am == 4:
            e(f"s_and_b32 s47, s{so}, 0x6000\ns_lshr_b32 s3, s47, 2\ns_xor_b32 s47, s47, s{so}\ns_add_u32 s47, s47, s3\ns_lshr_b32 s3, s{so}, 6\ns_and_b32 s3, s3, 0x1000\ns_xor_b32 s47, s47, s3")
            for i in range(4*h, 4*h+4): e(f"s_add_u32 s3, s47, {8192*(i//2)}\nbuffer_load_dwordx4 v[{base+4*i}:{base+4*i+3}], v1, s[{sr}:{sr+3}], s3 offen offset:{(i%2)*1024} nt")
            return
        if am == 2: e(f"s_lshr_b32 s47, s{so}, 5\ns_and_b32 s47, s47, 0x6000\ns_xor_b32 s47, s47, s{so}"); so = 47
        if am == 3: e(f"s_lshr_b32 s47, s{so}, 5\ns_lshl_b32 s3, s32, 13\ns_add_u32 s47, s47, s3\ns_and_b32 s47, s47, 0x6000\ns_xor_b32 s47, s47, s{so}"); so = 47
        for i in range(4*h, 4*h+4): e(f"buffer_load_dwordx4 v[{base+4*i}:{base+4*i+3}], v{1+h}, s[{sr}:{sr+3}], s{so} offen offset:{(i%4)*1024} nt")
    def hld():
        e(f"s_cmp_eq_u32 s35, 4\ns_cselect_b32 s3, {16 if hold & 1 else 0}, 0\ns_cmp_lt_u32 s32, s3\ns_cbranch_scc1 L_hold")
        e(f"s_cmp_ge_u32 s35, {2 if hold > 1 else 0}\ns_cbranch_scc1 L_nohold\nL_hold:"); waitflag(F_MOD, 4, 22, 2); e("L_nohold:")
    def pf(): e("s_cmp_lg_u32 s31, 0\ns_cbranch_scc1 L_nopf"); addflag(F_PF, 22); e("L_nopf:")
    for j in range(P):
        if hold and j == hg: hld()
        if early > 2 and j == P+2-early: pf()
        for h in range(2):
            if j: e(f"s_waitcnt vmcnt({THR})")
            half(64+32*j, 8 if kp else 12, h, 36)
        e("s_add_u32 s36, s36, 0x40000")
    if kp: e("s_mov_b32 s3, s24\ns_mov_b32 s24, s36\ns_mov_b32 s36, s3")
    if early == 2: pf()
    for h in range(2): e(f"s_waitcnt vmcnt({THR})"); half(32, 8, h, 24)
    e("v_and_b32 v4, 15, v0\nv_lshlrev_b32 v21, 4, v4\nv_and_b32 v5, 1, v0\nv_lshlrev_b32 v5, 4, v5\nv_mov_b32 v6, 0xffff\nv_lshlrev_b32 v23, v5, v6\nv_lshrrev_b32 v22, 1, v4")
    for r in range(4): e(f"v_cmp_eq_u32 vcc, {r}, v22\nv_cndmask_b32 v{4+r}, 0, v23, vcc")
    e(f"v_mov_b32 v20, 0xff800000\ns_mul_i32 s37, s31, {S*128}\ns_add_u32 s37, s37, {L_SC}\ns_add_u32 s39, s37, {128*P*kp}\ns_mov_b32 s26, 0x3db504f3\ns_mov_b32 s28, 0")
    e(f"s_cmp_eq_u32 s35, 6\ns_cselect_b32 s34, {S-RK}, {S}")
    if RK:
        e(f"s_cbranch_scc0 L_nrk\nv_add_u32 v22, s37, v1\ns_mov_b32 exec_lo, {hex(((1 << 8*RK) - 1) & 0xffffffff)}\ns_mov_b32 exec_hi, {hex(((1 << 8*RK) - 1) >> 32)}")
        for j in range(4): e(f"v_mov_b32 v{12+j}, 0xff7fffff")
        e(f"ds_write_b128 v22, v[12:15] offset:{128*(S-RK)}\ns_mov_b64 exec, -1\nL_nrk:")
        e(f"s_sub_u32 s46, 6, s32\ns_and_b32 s46, s46, 7\ns_lshl2_add_u32 s46, s46, s31\ns_lshl_b32 s46, s46, 13\ns_add_u32 s46, s46, {hex(((S-RK-NT)*0x40000) & 0xffffffff)}")
    e("s_cmp_lg_u32 s31, 0\ns_cbranch_scc1 L_nocd\ns_waitcnt vmcnt(0) lgkmcnt(0)"); addflag(F_CL, 22)
    if qs:
        e(f"s_mul_i32 s46, s46, 0x9e3779b1\ns_add_u32 s46, s46, 0x7f4a7c15\nv_lshlrev_b32 v22, 1, v21\ns_lshl_b32 s38, s32, 9\ns_add_u32 s38, s38, {Q}")
        pollt([f"buffer_load_dwordx4 v[{12+4*k}:{15+4*k}], v22, s[16:19], s38 offen offset:{16*k} sc1" for k in range(2)], range(12,20), 23, qs-1)
        for j in range(1,4): e(f"v_mov_b32 v{12+j}, v{12+2*j}")
        e(f"ds_write_b128 v21, v[12:15] offset:{L_Q}"); addflag(F_Q, 22)
    e("L_nocd:")
    if sy: e("s_waitcnt vmcnt(0)"); addflag(F_Q, 22)
    waitflag(F_Q, 5 if sy else 1, 22)
    e(f"ds_read_b128 v[8:11], v21 offset:{L_Q}"); TS(1)
    def sched(ph):
        dyn, fin, req, go = nl("dy"), nl("fi"), nl("rq"), nl("go")
        e(f"s_waitcnt lgkmcnt(0)\ns_cmp_ge_u32 s25, s34\ns_cbranch_scc1 {dyn}")
        e(f"s_add_u32 s24, s24, 0x40000\ns_mov_b32 s40, s24\ns_add_u32 s41, s39, 128\ns_add_u32 s25, s25, 1")
        if sy > 1:
            ns = nl("ns"); e(f"s_and_b32 s3, s25, {sy-1}\ns_cbranch_scc1 {ns}\ns_add_u32 s28, s28, 4"); addflag(36, 24); waitflag(36, "s28", 24, 0); e(f"{ns}:")
        e(f"s_cmp_lt_u32 s25, s34\ns_cbranch_scc1 {go}\ns_mov_b32 s38, 0")
        if not ph: waitflag(F_ARR, 1, 22)
        e(f"s_branch {req}")
        e(f"{dyn}:")
        if ph:
            sk = nl("sk"); e(f"s_cmp_gt_u32 s25, s34\ns_cbranch_scc1 {sk}\ns_add_u32 s25, s25, 1")
            waitflag(F_ML, 1, 24)
            e(f"ds_read_b32 v25, v24 offset:{L_M}\ns_waitcnt lgkmcnt(0)\nv_mul_f32 v25, s27, v25\nv_sub_f32 v24, v20, v25\nv_exp_f32 v24, v24\nv_mov_b32 v20, v25")
            for c in range(4): e(f"v_mul_f32 v{28+c}, v{28+c}, v24")
            e(f"{sk}:")
        e(f"s_cmp_ge_u32 s38, {NT+RK}\ns_cbranch_scc1 {fin}\n" + ("s_lshl2_add_u32 s43, s38, s31" if wc else "s_mov_b32 s43, s38") + f"\ns_lshl_b32 s40, s43, 13\ns_add_u32 s40, s40, {S*0x40000}\ns_lshl_b32 s43, s43, 7")
        if RK: e(f"s_lshl_b32 s3, s38, 18\ns_add_u32 s3, s3, s46\ns_cmp_ge_u32 s38, {NT}\ns_cselect_b32 s40, s3, s40")
        e(f"s_mov_b32 s41, {L_Z}" if ph else f"s_add_u32 s41, s43, {L_DY}")
        e(f"s_add_u32 s38, s38, 1\ns_sub_u32 s29, s29, 1\ns_cmp_lg_u32 s29, 0\ns_cbranch_scc1 {go}")
        e(f"{req}:\ns_cmp_lt_u32 s38, {TH}\ns_cselect_b32 s29, {T1}, 1\ns_mov_b32 s38, s29\ns_atomic_add s38, s[44:45], {4352*ph} glc\ns_branch {go}")
        e(f"{fin}:\ns_mov_b32 s42, 1")
        if ph: e(f"s_mov_b32 s40, 0x1000000\ns_mov_b32 s43, 0x1000000")
        else: e("s_mov_b32 s8, s12\ns_mov_b32 s9, s13\ns_mov_b32 s40, s36")
        e(f"{go}:")
    e(f"s_mov_b32 s25, {1+P*kp}\ns_mov_b32 s42, 0" + (f"\n.p2align {al}" if al else "") + "\nL_A:"); sched(0)
    for h in range(2):
        e("s_waitcnt vmcnt(4)")
        for j in range(4):
            for i in range(4*h, 4*h+4): e(f"v_dot2_f32_bf16 v{12+i}, v{32+4*i+j}, v{8+j}, {'0' if j==0 else 'v%d'%(12+i)}")
        half(32, 8, h, 40)
    tred([12]); e(f"v_add_f32_dpp v12, v12, v12 quad_perm:[1,0,3,2] {D}\nv_add_u32 v21, s39, v3")
    rb(12); e("v_mul_f32 v12, s26, v12"); rb(12)
    e("ds_write_b32 v21, v12\nv_max_f32 v20, v20, v12\ns_mov_b32 s39, s41")
    if kp:
        e(f"s_cmp_lg_u32 s25, {P+2}\ns_cbranch_scc1 L_npre\nv_add_u32 v21, s37, v3")
        for j0 in range(0, P, 2):
            ys = [(12, j0), (24, j0+1)][:min(2, P-j0)]; yr = [y for y, _ in ys]
            for y, g in ys:
                for j in range(4):
                    for i in range(8): e(f"v_dot2_f32_bf16 v{y+i}, v{64+32*g+4*i+j}, v{8+j}, {'0' if j==0 else 'v%d'%(y+i)}")
            tred(yr)
            for y in yr: e(f"v_add_f32_dpp v{y}, v{y}, v{y} quad_perm:[1,0,3,2] {D}")
            rb(*yr)
            for y in yr: e(f"v_mul_f32 v{y}, s26, v{y}")
            rb(*yr)
            for y, g in ys: e(f"ds_write_b32 v21, v{y} offset:{128*g}\nv_max_f32 v20, v20, v{y}")
            e("s_waitcnt lgkmcnt(0)")
        e("L_npre:"); P = 0
    e("s_cmp_eq_u32 s42, 0\ns_cbranch_scc1 L_A"); TS(2)
    allred("v_max_f32", [20], 21, (8,4,2))
    e(f"s_lshl_b32 s3, s31, 2\nv_mov_b32 v21, s3\nds_write_b32 v21, v20 offset:{L_WM}"); addflag(F_AD, 22)
    e("v_mul_f32 v20, s27, v20\nv_add_u32 v21, s37, v3\nv_mov_b32 v18, 0")
    for c in range(4): e(f"v_mov_b32 v{28+c}, 0")
    for j in range(P): e(f"ds_read_b32 v{22+j}, v21 offset:{128*j}")
    e(f"ds_read_b32 v17, v21 offset:{128*P}\ns_waitcnt lgkmcnt(0)")
    def pexp(dst, src): e(f"v_fma_f32 v{dst}, v{src}, s27, -v20\nv_exp_f32 v{dst}, v{dst}\nv_cvt_pk_bf16_f32 v{dst}, v{dst}, v{dst}")
    def pv(p, base, i0, i1):
        def ands(i):
            for c in range(4): e(f"v_and_b32_dpp v{8+4*(i&1)+c}, v{p}, v{4+c} row_newbcast:{8*(i&1)+4*((i>>1)&1)+2*(i>>2)} {D}")
        ands(i0)
        for i in range(i0, i1):
            if i+1 < i1: ands(i+1)
            a = 8+4*(i&1); e(f"v_mfma_f32_16x16x32_bf16 v[28:31], v[{a}:{a+3}], v[{base+4*i}:{base+4*i+3}], v[28:31]")
    for j in range(P): pexp(22+j, 22+j)
    for j in range(P): pv(22+j, 64+32*j, 0, 8)
    e(f"s_mov_b32 s25, {P+1}\ns_mov_b32 s42, 0\ns_mov_b32 s24, s36\ns_add_u32 s39, s37, {128*P}\ns_mov_b32 s43, 0x1000000" + (f"\n.p2align {al}" if al else "") + "\nL_B:"); sched(1)
    e("s_waitcnt vmcnt(4)\nv_add_f32 v16, v17, v18\nv_add_u32 v21, s41, v3"); pexp(16, 16)
    e("ds_read_b32 v17, v21\nbuffer_load_dword v18, v3, s[20:23], s43 offen sc1")
    pv(16, 32, 0, 4); half(32, 12, 0, 40); e("s_waitcnt vmcnt(5)"); pv(16, 32, 4, 8); half(32, 12, 1, 40)
    e("s_mov_b32 s39, s41\ns_cmp_eq_u32 s42, 0\ns_cbranch_scc1 L_B")
    e(f"v_and_b32 v21, 15, v0\nv_lshlrev_b32 v21, 5, v21\nv_and_b32 v22, 16, v0\nv_add_u32 v21, v21, v22\ns_lshl_b32 s3, s31, 9\nv_add_u32 v21, s3, v21\ns_mov_b32 exec_hi, 0")
    e(f"ds_write_b128 v21, v[28:31] offset:{L_OP}\ns_waitcnt lgkmcnt(0)"); TS(3); e("s_barrier\ns_waitcnt vmcnt(0)")
    if ts: e("s_cmp_lg_u32 s31, 0\ns_cbranch_scc1 L_end"); TSW((0,1,2,3))
    e("s_endpgm")
    e("L_end:\ns_endpgm")
    e(f""".section .rodata,"a"
.p2align 6
.amdhsa_kernel {KN}
  .amdhsa_next_free_vgpr 256
  .amdhsa_next_free_sgpr 102
  .amdhsa_accum_offset 256
  .amdhsa_group_segment_fixed_size 0
  .amdhsa_kernarg_size 112
  .amdhsa_user_sgpr_count 2
  .amdhsa_user_sgpr_kernarg_segment_ptr 1
  .amdhsa_system_sgpr_workgroup_id_x 1
.end_amdhsa_kernel""")
    assert nm == 1 and nh == 1
    txt = "\n".join(L); a = txt.index("L_tail:"); b = txt.index("L_stream:"); pol = ["sc1", "sc0 sc1", "sc1 nt", "sc0 sc1 nt"]
    mid = "\n".join(x.replace("sc1", pol[sp if x.startswith("buffer_store") else lp]) for x in txt[a:b].split("\n"))
    open(name+".s","w").write(fix(txt[:a] + mid + txt[b:])+"\n")
    build(name+".s")
    return f"{name}.co:256:512:{lds}"
def run(specs):
    a = [gen(n, **k) for n, k in specs]
    print(" ".join(a)); print(json.dumps(["work/bench","work/pairs"]+["work/"+x.split(":")[0] for x in a]))
```

```python
from gen import *
def helper(g):
    e, nl, TS0, TSW, srd, retry, waitflag, addflag, poll, rb, rows, allred, unpack, pollt, untag = (g[k] for k in
      "e nl TS TSW srd retry waitflag addflag poll rb rows allred unpack pollt untag".split())
    S, ND, L_DY, wfl, ts, dry, late, early, qs, nm, nh, sm, s1, s2, s3 = (g[k] for k in "S ND L_DY wfl ts dry late early qs nm nh sm s1 s2 s3".split())
    ppoll, d1, d2, d3, pr = (g[k] for k in "ppoll d1 d2 d3 pr".split())
    TS = (lambda k: TS0(k)) if ts == 1 else (lambda k: None)
    TP = (lambda k: TS0(k)) if ts == 2 else (lambda k: None)
    TR = (lambda k: TS0(k)) if ts == 3 else (lambda k: None)
    A, AP, Y, X, GA, SB, CB, T = 12, 16, 24, 40, 44, 48, 52, 56
    R4 = lambda r: range(r, r+4)
    def wload(dst, ptr, size, stride):
        srd(4, ptr, size)
        e(f"v_lshrrev_b32 v4, 3, v0\nv_mul_u32_u24 v4, {16*stride}, v4\nv_add_u32 v4, v11, v4")
        for i in range(16): e(f"s_add_u32 s3, s36, {i*stride}\nbuffer_load_dwordx4 v[{dst+4*i}:{dst+4*i+3}], v4, s[4:7], s3 offen {wfl}")
    def perm(w):
        for m in range(8):
            for j in range(4): e(f"v_perm_b32 v{w+8*m-4+j}, v{w+8*m+4+j}, v{w+8*m+j}, s28\nv_perm_b32 v{w+8*m+j}, v{w+8*m+4+j}, v{w+8*m+j}, s29")
    def bcast():
        e(f"v_cvt_pk_bf16_f32 v{A}, v{A}, v{A+1}\nv_cvt_pk_bf16_f32 v{A+1}, v{A+2}, v{A+3}")
        for hb, bm in ((0, 3), (8, 12)):
            for p in range(4):
                for k in range(2): e(f"v_mov_b32_dpp v{AP+2*p+k}, v{A+k} row_newbcast:{hb+2*p} row_mask:0xf bank_mask:{hex(bm)}")
    def dots(y, w):
        for m in range(8):
            for j in range(8): e(f"v_dot2_f32_bf16 v{y+j}, v{w+8*m-4+4*(j&1)+j//2}, v{AP+m}, {'0' if m == 0 else 'v%d' % (y+j)}")
    def red(ys):
        for y in ys:
            for p in range(0,8,2): e(f"v_add_f32_dpp v{y+p}, v{y+p}, v{y+p} row_ror:8 row_mask:0xf bank_mask:0x3")
            for p in range(0,8,2): e(f"v_add_f32_dpp v{y+p}, v{y+p+1}, v{y+p+1} row_ror:8 row_mask:0xf bank_mask:0xc")
        for y in ys: e(f"v_permlane16_swap_b32 v{y}, v{y+2}\nv_permlane16_swap_b32 v{y+4}, v{y+6}")
        for y in ys: e(f"v_add_f32 v{y}, v{y}, v{y+2}\nv_add_f32 v{y+4}, v{y+4}, v{y+6}")
        for y in ys: e(f"v_permlane32_swap_b32 v{y}, v{y+4}")
        for y in ys: e(f"v_add_f32 v{y}, v{y}, v{y+4}")
    def sum4(t, d=None):
        d, u = (t, t+8) if d is None else (d, d+4)
        for j in range(4): e(f"v_add_f32 v{d+j}, v{t+j}, v{t+4+j}\nv_add_f32 v{u+j}, v{t+8+j}, v{t+12+j}")
        for j in range(4): e(f"v_add_f32 v{d+j}, v{d+j}, v{u+j}")
    def pubset(): e(f"v_and_b32 v130, 0xff, v5\nv_lshrrev_b32 v131, 4, v1\nv_mul_u32_u24 v131, {CS}, v131\nv_add_u32 v131, v131, v130")
    def pub(goff, tag, nc):
        t = Y; e({1: "s_mov_b64 exec, 0xffff", 2: "s_mov_b32 exec_hi, 0"}.get(nc, ""))
        for w in range(4): e(f"ds_read_b128 v[{t+4*w}:{t+4*w+3}], v130 offset:{L_RA+256*w}")
        e("s_waitcnt lgkmcnt(0)"); sum4(t)
        if tag: e(f"v_cvt_pk_bf16_f32 v{t}, v{t}, v{t+1}\nv_cvt_pk_bf16_f32 v{t+2}, v{t+2}, v{t+3}\nv_mov_b32 v{t+1}, s46\nv_mov_b32 v{t+3}, s46")
        else:
            for j in R4(t): e(f"v_min_u32 v{j}, -2, v{j}")
        e(f"s_lshl_b32 s3, s34, 8\ns_add_u32 s3, s3, {goff}\nbuffer_store_dwordx4 v[{t}:{t+3}], v131, s[16:19], s3 offen sc1")
        if nc == 8: e(f"s_add_u32 s3, s3, {4*CS}\nbuffer_store_dwordx4 v[{t}:{t+3}], v131, s[16:19], s3 offen sc1")
        e("s_mov_b64 exec, -1")
    def div(d, den, rcp, same):
        for j in range(4): e(f"v_mul_f32 v{AP+j}, v{d+j}, v{rcp+(0 if same else j)}")
        for j in range(4): e(f"v_fma_f32 v{d+j}, -v{AP+j}, v{den+(0 if same else j)}, v{d+j}")
        for j in range(4): e(f"v_fma_f32 v{d+j}, v{d+j}, v{rcp+(0 if same else j)}, v{AP+j}")
    def lnfin(x):
        rb(T, T+1); e(f"v_add_f32 v{T+1}, 0x3727c5ac, v{T+1}"); rb(T+1); e(f"v_sqrt_f32 v{T+1}, v{T+1}"); rb(T+1); e(f"v_rcp_f32 v{T+2}, v{T+1}")
        for j in range(4): e(f"v_sub_f32 v{A+j}, v{x+j}, v{T}")
        rb(*R4(A)); div(A, T+1, T+2, True); rb(*R4(A))
    def modul():
        for j in range(4): e(f"v_mul_f32 v{A+j}, v{A+j}, v{CB+j}")
        rb(*R4(A))
        for j in range(4): e(f"v_add_f32 v{A+j}, v{A+j}, v{SB+j}")
    def plus1():
        for j in R4(CB): e(f"v_add_f32 v{j}, 1.0, v{j}")
        rb(*R4(CB))
    def tagw(): e("s_waitcnt lgkmcnt(0)\ns_mul_i32 s46, s46, 0x9e3779b1\ns_add_u32 s46, s46, 0x7f4a7c15")
    ld = lambda r, off, v=2, so="0": f"buffer_load_dwordx4 v[{r}:{r+3}], v{v}, s[16:19], {so} offen offset:{off} sc1"
    e(f"s_load_dword s46, s[74:75], {EP}\ns_sub_u32 s31, s31, 4\nv_and_b32 v0, 255, v0\nv_lshrrev_b32 v2, 1, v0\nv_lshlrev_b32 v9, 3, v2\nv_lshlrev_b32 v2, 4, v2\nv_and_b32 v11, 7, v0\nv_lshlrev_b32 v11, 4, v11\nv_lshlrev_b32 v5, 4, v1")
    e("s_lshl_b32 s34, s32, 1\ns_and_b32 s3, s35, 1\ns_add_u32 s34, s34, s3\ns_cmp_lt_u32 s35, 2\ns_cbranch_scc1 L_rq\ns_cmp_lt_u32 s35, 4\ns_cbranch_scc1 L_r0\ns_mov_b32 s34, s32\ns_cmp_eq_u32 s35, 4\ns_cbranch_scc1 L_rm")
    e("s_cmp_eq_u32 s35, 6\ns_cselect_b32 s3, 28, 16\ns_cmp_lt_u32 s32, s3\ns_cselect_b32 s3, s35, 8\ns_cmp_eq_u32 s35, 5\ns_mov_b32 s35, s3\ns_cbranch_scc0 L_r0\ns_add_u32 s34, s32, 16\ns_cmp_eq_u32 s35, 8\ns_mov_b32 s35, 8\ns_cbranch_scc0 L_r0")
    def common():
        e("s_barrier\nv_and_b32 v3, 1, v0\nv_lshrrev_b32 v6, 3, v1\nv_lshrrev_b32 v7, 1, v11\nv_add_u32 v6, v6, v7\nv_lshlrev_b32 v7, 4, v6\nv_lshlrev_b32 v6, 2, v6\ns_lshl_b32 s3, s31, 8\nv_add_u32 v6, s3, v6\ns_lshl_b32 s3, s31, 2\nv_add_u32 v7, s3, v7")
        e("s_mov_b32 s28, 0x05040100\ns_mov_b32 s29, 0x07060302"); pubset(); e(f"s_and_b32 s25, s34, {nm-1}\ns_mul_i32 s25, s25, {CS}\ns_add_u32 s25, s25, {MOD}"); tagw()
    def fin(goff, nc):
        bcast(); dots(Y, 64); red([Y]); e(f"ds_write_b32 v6, v{Y} offset:{L_RA}"); addflag(F_MOD, T)
        e("s_cmp_lg_u32 s31, 0\ns_cbranch_scc1 L_h3"); waitflag(F_MOD, 4, T, 0); pub(goff, True, nc); TP(7); e("s_branch L_h1")
    e("L_rm:\ns_lshl_b32 s36, s34, 7"); srd(8, 66, 1024); e(f"buffer_load_dwordx2 v[{T}:{T+1}], v9, s[8:11], 0 offen")
    wload(64, 68, 512*6144, 6144); common()
    e("s_waitcnt vmcnt(16)"); unpack(A, T, 2)
    for j in range(4): e(f"v_mul_f32 v{X+j}, s27, v{A+j}")
    for j in range(4): e(f"v_exp_f32 v{X+j}, -v{X+j}")
    for j in range(4): e(f"v_add_f32 v{X+j}, 1.0, v{X+j}")
    for j in range(4): e(f"v_rcp_f32 v{GA+j}, v{X+j}")
    for j in range(4): e(f"v_min_f32 v{X+j}, 0x7f7fffff, v{X+j}")
    div(A, X, GA, False); e("s_waitcnt vmcnt(0)"); TP(4); perm(64); fin(MOD, nm)
    e("L_rq:\ns_lshl_b32 s36, s34, 7"); srd(8, 48, 1024); e(f"buffer_load_dwordx2 v[{T}:{T+1}], v9, s[8:11], 0 offen\nbuffer_load_dwordx4 v[{AP}:{AP+3}], v5, s[8:11], 0 offen")
    wload(64, 54, 512*8192, 8192); common()
    e("s_waitcnt vmcnt(16)"); unpack(X, T, 2); unpack(Y, AP, 4); e(f"v_add_f32 v{T}, v{Y}, v{Y+1}")
    for j in range(2,8): e(f"v_add_f32 v{T}, v{T}, v{Y+j}")
    allred("v_add_f32", [T], T+1); e(f"v_mul_f32 v{T}, 0x3b000000, v{T}")
    for j in range(8): e(f"v_sub_f32 v{Y+j}, v{Y+j}, v{T}")
    e(f"v_mul_f32 v{T+1}, v{Y}, v{Y}")
    for j in range(1,8): e(f"v_fmac_f32 v{T+1}, v{Y+j}, v{Y+j}")
    allred("v_add_f32", [T+1], T+2); e(f"v_mul_f32 v{T+1}, 0x3b000000, v{T+1}"); lnfin(X)
    e("s_waitcnt vmcnt(0)"); TP(5); perm(64)
    pollt([ld(SB, 0, 2, "s25"), ld(CB, 2048, 2, "s25")], range(SB,SB+8), T, sm); TP(6); untag(range(SB,SB+8)); plus1(); modul(); fin(Q, 1)
    wo_off = "s_lshr_b32 s38, s34, 3\ns_lshl_b32 s36, s38, 19\ns_and_b32 s3, s34, 7\ns_lshl_b32 s3, s3, 7\ns_add_u32 s36, s36, s3"
    def firstw():
        e("s_cmp_ge_u32 s35, 4\ns_cbranch_scc1 L_e2\n" + wo_off); wload(64, 56, 4096*1024, 1024)
        e("s_branch L_e3\nL_e2:\ns_cmp_lg_u32 s35, 6\ns_cbranch_scc1 L_e3\ns_lshl_b32 s36, s34, 7"); wload(64, 60, 512*3584, 3584); e("L_e3:")
    e("L_r0:")
    if early == 1: firstw()
    common()
    if early > 1: waitflag(F_PF, 1, T, 4); firstw()
    e("s_cmp_lg_u32 s31, 0\ns_cbranch_scc1 L_h3\nL_h1:")
    if qs: e("s_branch L_h3")
    e(f"v_and_b32 v4, 15, v1\nv_lshlrev_b32 v10, 4, v4\nv_lshlrev_b32 v4, 5, v4\ns_lshl_b32 s37, s32, 9\ns_add_u32 s37, s37, {Q}")
    pollt([ld(Y, 0, 4, "s37"), ld(Y+4, 16, 4, "s37")], range(Y,Y+8), T, 2)
    for j in range(1,4): e(f"v_mov_b32 v{Y+j}, v{Y+2*j}")
    e(f"ds_write_b128 v10, v[{Y}:{Y+3}] offset:{L_Q}"); addflag(F_Q, T)
    e("L_h3:\nv_lshlrev_b32 v10, 4, v0")
    for j in R4(Y): e(f"v_mov_b32 v{j}, 0xff7fffff")
    for k in range(ND*128//4096): e(f"v_add_u32 v4, {L_DY+4096*k}, v10\nds_write_b128 v4, v[{Y}:{Y+3}]")
    if (4*S*128) % 4096: e(f"v_add_u32 v4, {L_DY-4096}, v10\nv_cmp_lt_u32 vcc, {(4*S*128) % 4096 - 1}, v10\ns_cbranch_vccz L_npad\ns_mov_b64 exec, vcc\nds_write_b128 v4, v[{Y}:{Y+3}]\ns_mov_b64 exec, -1\nL_npad:")
    addflag(F_CL, T); waitflag(F_CL, 5, T, 8)
    e("s_cmp_lg_u32 s31, 0\ns_cbranch_scc1 L_h2"); srd(4, 72, 256)
    e(f"s_and_b32 s3, s2, 3\ns_lshl_b32 s3, s3, 6\nv_mov_b32 v{T+1}, 1\ns_mov_b64 exec, 1\nbuffer_atomic_add v{T+1}, v{T}, s[4:7], s3 offen sc1\ns_mov_b64 exec, -1")
    e(f"v_lshlrev_b32 v4, 6, v1\nL_arr:\ns_sleep 64\nbuffer_load_dword v{T+1}, v4, s[4:7], 0 offen sc1\ns_waitcnt vmcnt(0)\nv_cmp_le_u32 vcc, 64, v{T+1}\ns_cmp_eq_u32 vcc_lo, 15\ns_cbranch_scc1 L_arrd")
    retry("L_arr"); e("L_arrd:"); addflag(F_ARR, T)
    e(f"s_cmp_lg_u32 s2, 0\ns_cbranch_scc1 L_h2\nv_mov_b32 v{T+1}, s46\ns_mov_b32 s3, {EP}\ns_mov_b64 exec, 1\nbuffer_store_dword v{T+1}, v{T}, s[16:19], s3 offen sc1\ns_mov_b64 exec, -1\nL_h2:")
    e("s_cmp_lt_u32 s35, 2\ns_cbranch_scc1 L_h4\ns_cmp_ge_u32 s35, 4\ns_cbranch_scc1 L_w2\ns_lshr_b32 s38, s34, 3\ns_lshl_b32 s36, s38, 19\ns_and_b32 s3, s34, 7\ns_lshl_b32 s3, s3, 7\ns_add_u32 s36, s36, s3")
    if not early: wload(64, 56, 4096*1024, 1024)
    e("s_waitcnt vmcnt(0)"); perm(64); e("s_branch L_h4\nL_w2:\ns_and_b32 s3, s35, 14\ns_cmp_lg_u32 s3, 6\ns_cbranch_scc1 L_h4")
    srd(8, 48, 1024); e(f"buffer_load_dwordx2 v[{T+2}:{T+3}], v9, s[8:11], 0 offen\ns_and_b32 s39, s34, 15\ns_lshl_b32 s39, s39, 7\ns_add_u32 s40, s39, 10240\ns_add_u32 s40, s40, s25\ns_add_u32 s41, s25, 4096\ns_add_u32 s42, s25, 8192")
    mr = list(range(GA,GA+12))+list(R4(252))
    pollt([ld(GA, 0, 2, "s41"), ld(SB, 2048, 2, "s41"), ld(CB, 0, 2, "s42"), ld(Y, 0, 11, "s40")], list(range(GA,GA+12))+list(R4(Y)), T, 8)
    untag(list(range(GA,GA+12))+list(R4(Y))); plus1(); unpack(X, T+2, 2); e("s_cmp_eq_u32 s35, 6\ns_cbranch_scc1 L_w3")
    for j in range(4): e(f"v_mov_b32 v{SB+j}, v{Y+j}")
    e("s_branch L_h4\nL_w3:\ns_lshl_b32 s36, s34, 7")
    if not early: wload(64, 60, 512*3584, 3584)
    e("s_waitcnt vmcnt(0)"); perm(64)
    def restw(m=3):
        if m & 1: e("s_lshl_b32 s36, s34, 7"); wload(128, 62, 512*3584, 3584); e("s_waitcnt vmcnt(0)"); perm(128)
        if m < 2: return
        srd(4, 64, 1792*1024); e("s_lshl_b32 s36, s34, 2\ns_add_u32 s36, s36, s31\ns_lshl_b32 s36, s36, 14")
        for k in range(16): e(f"s_add_u32 s3, s36, {1024*k}\nbuffer_load_dwordx4 v[{192+4*k}:{195+4*k}], v5, s[4:7], s3 offen {wfl}")
        e("s_waitcnt vmcnt(0)"); perm(192)
    restw((3, 0, 1)[late])
    e("L_h4:")
    waitflag(F_AD, 4, T, 16)
    e(f"ds_read_b128 v[{A}:{A+3}], v{T} offset:{L_WM}\ns_waitcnt lgkmcnt(0)\nv_max3_f32 v{A}, v{A}, v{A+1}, v{A+2}\nv_max_f32 v{A}, v{A}, v{A+3}\nv_mul_f32 v{A+2}, s27, v{A}\nv_mov_b32 v{A+1}, 0")
    e(f"s_mul_i32 s37, s32, {ND*128}\ns_add_u32 s37, s37, {SC-L_DY}\ns_mov_b32 s43, {L_SC}\nL_scan:")
    assert (ND*128) % 4096 == 0
    e(f"v_add_u32 v4, s43, v10\nds_read_b128 v[{Y}:{Y+3}], v4\ns_waitcnt lgkmcnt(0)\ns_cmp_lt_u32 s43, {L_DY}\ns_cbranch_scc1 L_ns")
    e(f"v_cmp_ne_u32 vcc, 0xff7fffff, v{Y}\ns_and_saveexec_b64 s[44:45], vcc\ns_cbranch_execz L_ns\nbuffer_store_dwordx4 v[{Y}:{Y+3}], v4, s[16:19], s37 offen sc1\nL_ns:\ns_mov_b64 exec, -1")
    for j in range(4): e(f"v_fma_f32 v{T+j}, v{Y+j}, s27, -v{A+2}")
    for j in range(4): e(f"v_exp_f32 v{T+j}, v{T+j}")
    for j in range(4): e(f"v_add_f32 v{A+1}, v{A+1}, v{T+j}")
    e(f"s_add_u32 s43, s43, 4096\ns_cmp_lt_u32 s43, {L_DY+ND*128}\ns_cbranch_scc1 L_scan")
    allred("v_add_f32", [A+1], T)
    e(f"s_lshl_b32 s3, s31, 2\nv_mov_b32 v4, s3\nds_write_b32 v4, v{A+1} offset:{L_LP}\ns_waitcnt vmcnt(0)"); addflag(F_HB, T)
    e("s_cmp_lg_u32 s31, 0\ns_cbranch_scc1 L_h5"); waitflag(F_HB, 4, T)
    e(f"ds_read_b128 v[{Y}:{Y+3}], v{T} offset:{L_LP}\ns_waitcnt lgkmcnt(0)\nv_add_f32 v{Y}, v{Y}, v{Y+1}\nv_add_f32 v{Y+2}, v{Y+2}, v{Y+3}\nv_add_f32 v{A+1}, v{Y}, v{Y+2}\nv_min_u32 v{A}, -2, v{A}\nv_min_u32 v{A+1}, -2, v{A+1}")
    e(f"s_lshl_b32 s3, s2, 3\ns_add_u32 s3, s3, {ML}\ns_mov_b64 exec, 1\nbuffer_store_dwordx2 v[{A}:{A+1}], v{T}, s[16:19], s3 offen sc1\ns_mov_b64 exec, -1")
    e(f"v_lshrrev_b32 v4, 1, v11\ns_lshl_b32 s37, s32, 6\ns_add_u32 s37, s37, {ML}")
    poll([f"buffer_load_dwordx2 v[{Y}:{Y+1}], v4, s[16:19], s37 offen sc1"], (Y,Y+1), Y+2, 8)
    e(f"v_mov_b32 v{Y+2}, v{Y}")
    for k in (4,2,1): e(f"v_max_f32_dpp v{Y+2}, v{Y+2}, v{Y+2} row_ror:{k} {D}")
    e(f"v_sub_f32 v{Y}, v{Y}, v{Y+2}\nv_mul_f32 v{Y}, s27, v{Y}\nv_exp_f32 v{Y}, v{Y}\nv_mul_f32 v{Y}, v{Y}, v{Y+1}")
    for k in (4,2,1): e(f"v_add_f32_dpp v{Y}, v{Y}, v{Y} row_ror:{k} {D}")
    e(f"v_rcp_f32 v{Y}, v{Y}\nds_write_b32 v{T}, v{Y+2} offset:{L_M}\nv_readfirstlane_b32 s30, v{Y}"); addflag(F_ML, T); e("L_h5:")
    if late: e("s_cmp_lg_u32 s35, 6\ns_cbranch_scc1 L_h6"); restw((0, 3, 2)[late]); e("L_h6:")
    e("v_and_b32 v8, 0x1ff, v2\nv_lshl_add_u32 v8, v3, 11, v8\nv_lshl_add_u32 v9, v3, 13, v2\nv_lshrrev_b32 v10, 3, v0\nv_lshl_add_u32 v10, v10, 11, v11")
    e(f"v_and_b32 v252, 15, v1\nv_lshlrev_b32 v252, 4, v252\ns_lshl_b32 s3, s31, 8\nv_add_u32 v252, s3, v252\nv_lshlrev_b32 v253, 5, v1\ns_lshl_b32 s3, s31, 3\nv_mov_b32 v254, s3\nv_mov_b32 v255, 0\ns_lshl_b32 s3, s31, 7\nv_add_u32 v3, s3, v11")
    e(f"s_lshl_b32 s37, s38, 2\ns_add_u32 s37, s37, s31\ns_lshl_b32 s37, s37, 12\ns_add_u32 s37, s37, {H1}\ns_lshl_b32 s40, s2, 9\ns_add_u32 s40, s40, {H1}\ns_and_b32 s41, s34, {nh-1}\ns_mul_i32 s41, s41, {CS}\ns_add_u32 s41, s41, {H2}\ns_add_u32 s42, s41, 4096")
    e(f"s_add_u32 s20, s74, {H3}\ns_addc_u32 s21, s75, 0\ns_mov_b32 s23, 0x20000\ns_mov_b32 s26, s18"); srd(4, 70, 0)
    for k in range(1,4): e(f"s_add_u32 s{42+k}, s39, {65536*k}")
    e(f"s_mov_b32 s47, {dry}\nL_tail:\ns_cmp_eq_u32 s47, 0\ns_cselect_b32 s18, s26, 0\ns_cselect_b32 s22, {112*2048}, 0\ns_cselect_b32 s6, 1024, 0")
    def bar():
        l = nl("b"); e(f"s_waitcnt lgkmcnt(0)\ns_cmp_lg_u32 s47, 0\ns_cbranch_scc1 {l}\ns_barrier\n{l}:")
    bar(); e("s_cmp_lg_u32 s31, 0\ns_cbranch_scc1 L_t1\ns_mov_b32 exec_hi, 0")
    for w in range(4): e(f"ds_read_b128 v[{Y+4*w}:{Y+3+4*w}], v5 offset:{L_OP+512*w}")
    e("s_waitcnt lgkmcnt(0)"); sum4(Y)
    for j in range(4): e(f"v_mul_f32 v{T+j}, s30, v{Y+j}")
    for j in R4(T): e(f"v_min_u32 v{j}, -2, v{j}")
    e(f"buffer_store_dwordx4 v[{T}:{T+3}], v5, s[16:19], s40 offen sc1\ns_mov_b64 exec, -1\nL_t1:\ns_and_b32 s3, s35, 14\ns_cmp_eq_u32 s3, 6\ns_cbranch_scc1 L_t2\ns_cmp_lg_u32 s3, 2\ns_cbranch_scc1 L_fin")
    def pair(src):
        sum4(src, AP)
        for j in range(4): e(f"v_add_f32_dpp v{A+j}, v{AP+j}, v{AP+j} quad_perm:[1,0,3,2] {D}")
    ppoll([ld(136+4*k, 512*k, 8, "s37") for k in range(4)], range(136,152), AP, d1); TS(4)
    pair(136); bcast(); dots(Y, 64); red([Y]); e(f"ds_write_b32 v6, v{Y} offset:{L_RA}"); bar()
    e("s_cmp_lg_u32 s31, 0\ns_cbranch_scc1 L_fin"); pub(H2, False, nh); e("s_branch L_fin\nL_t2:")
    ppoll([ld(Y+4*k, 2048*(k&1), 9, f"s{41+k//2}") for k in range(4)], range(Y,Y+16), AP, d2, pr); TS(5); TR(4)
    pair(Y); rb(*R4(A))
    for j in range(4): e(f"v_mul_f32 v{A+j}, v{A+j}, v{GA+j}")
    rb(*R4(A))
    for j in range(4): e(f"v_add_f32 v{A+j}, v{A+j}, v{X+j}")
    rb(*R4(A)); e("s_cmp_eq_u32 s35, 7\ns_cbranch_scc1 L_t3")
    e(f"v_add_f32 v{T}, v{A}, v{A+1}\nv_add_f32 v{T+1}, v{A+2}, v{A+3}\nv_add_f32 v{T}, v{T}, v{T+1}")
    allred("v_add_f32", [T], T+1, (8,4,2)); e(f"v_mul_f32 v{T}, 0x3c000000, v{T}")
    for j in range(4): e(f"v_sub_f32 v{AP+j}, v{A+j}, v{T}")
    e(f"v_mul_f32 v{T+1}, v{AP}, v{AP}\nv_mul_f32 v{T+2}, v{AP+1}, v{AP+1}\nv_fmac_f32 v{T+1}, v{AP+2}, v{AP+2}\nv_fmac_f32 v{T+2}, v{AP+3}, v{AP+3}\nv_add_f32 v{T+1}, v{T+1}, v{T+2}")
    allred("v_add_f32", [T+1], T+2, (8,4,2))
    e(f"ds_write_b64 v254, v[{T}:{T+1}] offset:{L_ST}"); bar()
    e(f"ds_read_b128 v[{AP}:{AP+3}], v255 offset:{L_ST}\nds_read_b128 v[{AP+4}:{AP+7}], v255 offset:{L_ST+16}\ns_waitcnt lgkmcnt(0)")
    e(f"v_add_f32 v{T}, v{AP}, v{AP+2}\nv_add_f32 v{T+2}, v{AP+4}, v{AP+6}\nv_add_f32 v{T+1}, v{AP+1}, v{AP+3}\nv_add_f32 v{T+3}, v{AP+5}, v{AP+7}\nv_add_f32 v{T}, v{T}, v{T+2}\nv_add_f32 v{T+1}, v{T+1}, v{T+3}\nv_mul_f32 v{T}, 0x3e800000, v{T}\nv_mul_f32 v{T+1}, 0x3c000000, v{T+1}")
    for r in range(AP,AP+8,2): e(f"v_sub_f32 v{r}, v{r}, v{T}")
    for r in range(AP,AP+8,2): e(f"v_fmac_f32 v{T+1}, v{r}, v{r}")
    e(f"v_mul_f32 v{T+1}, 0x3e800000, v{T+1}"); lnfin(A); modul(); bcast(); e("s_waitcnt vmcnt(0)"); TR(5); dots(Y, 64); dots(Y+8, 128); red([Y, Y+8])
    e(f"ds_write_b32 v7, v{Y} offset:{L_RD}\nds_write_b32 v7, v{Y+8} offset:{L_RD+1024}"); bar()
    e(f"ds_read_b128 v[{Y}:{Y+3}], v252 offset:{L_RD}\nds_read_b128 v[{Y+4}:{Y+7}], v252 offset:{L_RD+1024}\ns_waitcnt lgkmcnt(0)")
    TR(6); G, U, Z = Y, Y+4, Y+1
    e(f"v_add_f32 v{G}, v{G}, v{G+1}\nv_add_f32 v{G+2}, v{G+2}, v{G+3}\nv_add_f32 v{U}, v{U}, v{U+1}\nv_add_f32 v{U+2}, v{U+2}, v{U+3}\nv_add_f32 v{G}, v{G}, v{G+2}\nv_add_f32 v{U}, v{U}, v{U+2}"); rb(G, U)
    e(f"v_mul_f32 v{Z}, v{G}, v{G}\nv_mul_f32 v{Z}, 0x3d372713, v{Z}\nv_fma_f32 v{Z}, v{Z}, v{G}, v{G}\nv_mul_f32 v{Z}, 0xc0135761, v{Z}\nv_exp_f32 v{Z}, v{Z}\nv_add_f32 v{Z}, 1.0, v{Z}\nv_rcp_f32 v{Z}, v{Z}\nv_mul_f32 v{G}, v{G}, v{Z}")
    rb(G); e(f"v_mul_f32 v{G}, v{G}, v{U}\nv_mov_b32_dpp v{Z}, v{G} quad_perm:[1,1,3,3] {D}\nv_cvt_pk_bf16_f32 v{G}, v{G}, v{Z}")
    for m in range(8): e(f"v_mov_b32_dpp v{AP+m}, v{G} row_newbcast:{2*m} {D}")
    dots(Y, 192)
    for j in range(8): e(f"v_min_u32 v{Y+j}, -2, v{Y+j}")
    e(f"s_lshr_b32 s3, s36, 3\nbuffer_store_dwordx4 v[{Y}:{Y+3}], v253, s[20:23], s3 offen sc1\nbuffer_store_dwordx4 v[{Y+4}:{Y+7}], v253, s[20:23], s3 offen offset:16 sc1"); TR(7); e("s_branch L_fin")
    e(f"L_t3:\nds_write_b128 v2, v[{A}:{A+3}] offset:{L_X1}")
    if g["tch"]: e("buffer_load_dword v152, v255, s[4:7], 0 offen")
    ppoll([f"buffer_load_dwordx4 v[{136+4*k}:{139+4*k}], v10, s[20:23], s{42+k if k else 39} offen sc1" for k in range(4)], range(136,152), AP, d3); TS(6)
    sum4(136, Y); allred("v_add_f32", list(R4(Y)), Y+4, (8,))
    e(f"ds_write_b128 v3, v[{Y}:{Y+3}] offset:{L_RF}"); bar(); e("s_cmp_lg_u32 s31, 0\ns_cbranch_scc1 L_fin\nv_add_u32 v4, s39, v11")
    for w in range(4): e(f"ds_read_b128 v[{Y+4*w}:{Y+3+4*w}], v11 offset:{L_RF+128*w}")
    e(f"ds_read_b128 v[{A}:{A+3}], v4 offset:{L_X1}\ns_waitcnt lgkmcnt(0)"); sum4(Y); rb(*R4(Y))
    for j in range(4): e(f"v_mul_f32 v{Y+j}, v{Y+j}, v{SB+j}")
    rb(*R4(Y))
    for j in range(4): e(f"v_add_f32 v{Y+j}, v{Y+j}, v{A+j}")
    e(f"v_cvt_pk_bf16_f32 v{Y}, v{Y}, v{Y+1}\nv_cvt_pk_bf16_f32 v{Y+1}, v{Y+2}, v{Y+3}\nv_lshrrev_b32 v4, 1, v4\ns_mov_b64 exec, 255\nbuffer_store_dwordx2 v[{Y}:{Y+1}], v4, s[4:7], 0 offen\ns_mov_b64 exec, -1")
    e("L_fin:\ns_waitcnt vmcnt(0)\ns_cmp_lg_u32 s47, 0\ns_mov_b32 s47, 0\ns_cbranch_scc1 L_tail"); TS(7)
    if ts: e("s_cmp_lg_u32 s31, 0\ns_cbranch_scc1 L_end"); TSW((4,5,6,7))
```

```python
import re
TRANS = ("v_exp_f32","v_log_f32","v_rcp_f32","v_rsq_f32","v_sqrt_f32")
def regs(tok):
    tok = tok.strip().lstrip("-").replace("|","")
    m = re.fullmatch(r"([vs])(\d+)", tok)
    if m: return {(m.group(1), int(m.group(2)))}
    m = re.fullmatch(r"([vs])\[(\d+):(\d+)\]", tok)
    if m: return {(m.group(1), i) for i in range(int(m.group(2)), int(m.group(3))+1)}
    if tok == "vcc": return {("s","vcc")}
    if tok == "exec": return {("s","exec")}
    return set()
def parse(line):
    line = line.split(";")[0].strip()
    if not line or line.endswith(":") or line.startswith("."): return None
    op, _, rest = line.partition(" ")
    rest = re.sub(r"quad_perm:\[[0-9, ]*\]", "quad_perm", rest)
    toks = [t for t in re.split(r",\s*", rest) if t]
    if toks:
        last = toks[-1].split(" ")
        toks[-1] = last[0]; mods = " ".join(last[1:])
    else: mods = ""
    r = [regs(t) for t in toks]
    d = dict(op=op, mods=mods, w=set(), rd=set(), valu=op.startswith("v_"), st=set())
    if op.startswith("v_"):
        d["w"] = set(r[0]); d["rd"] = set().union(*r[1:]) if len(r) > 1 else set()
        if op.startswith(("v_fmac","v_permlane","v_dot2c")) or "dpp" in op: d["rd"] |= r[0]
        if op.startswith("v_permlane"): d["w"] |= r[1]
    elif op.startswith(("buffer_","ds_","global_")):
        d["rd"] = set().union(*r) if r else set()
        if op.startswith("buffer_load") or op.startswith("ds_read"): d["rd"] = set().union(*r[1:]); d["ld"] = r[0]
        if op in ("buffer_store_dwordx4","buffer_store_dwordx3"): d["st"] = r[0]
    return d
def need(p, c):
    n = 0
    pv = {x for x in p["w"] if x[0]=="v"}; ps = {x for x in p["w"] if x[0]=="s"}
    cop = c["op"]; mem = cop.startswith(("buffer_","ds_","global_"))
    if p["st"] and c["valu"] and p["st"] & c["w"]: n = max(n, 2)
    if not p["valu"]: return n
    pm = p["op"].startswith("v_mfma"); cm = cop.startswith("v_mfma")
    if pm:
        if cm:
            return n
        if (c["valu"] and pv & (c["rd"]|c["w"])) or (mem and pv & (c["rd"]|c.get("ld",set()))): n = max(n, 8)
        return n
    if cm and pv & c["rd"]: n = max(n, 3 if p["op"].startswith("v_dot") else 2)
    if c["valu"] and pv & c["rd"]:
        if "dpp" in cop or cop.startswith("v_permlane"): n = max(n, 2)
        if cop.startswith(("v_readlane","v_readfirstlane")): n = max(n, 1)
        if p["op"] in TRANS: n = max(n, 1)
    if p["op"].startswith("v_dot") and p["op"] != cop and pv & (c["rd"]|c["w"]): n = max(n, 3)
    if ps:
        if c["valu"] and ps & c["rd"]: n = max(n, 4 if cop.startswith(("v_readlane","v_writelane")) else 2)
        if mem and ps & c["rd"]: n = max(n, 5)
    return n
def fix(text):
    out = []; hist = []
    for line in text.split("\n"):
        c = parse(line)
        if c is None:
            out.append(line); continue
        dist = 0; req = 0
        for p, wsn in reversed(hist):
            req = max(req, need(p, c) - dist)
            dist += wsn
            if dist >= 8: break
        if req > 0:
            out.append(f"s_nop {req-1}")
            hist.append((parse("s_nop 0"), req))
        out.append(line)
        wsn = int(line.split()[1])+1 if c["op"] == "s_nop" else 1
        hist.append((c, wsn)); hist = hist[-12:]
    return "\n".join(out)
```

```python
import sys
from gen import *
b=dict(ts=1,P=4,early=1,kp=1,sy=2,late=2,J=8,wc=1,TH=44,RK=3,S=55)
L=[]
for a in sys.argv[1:]:
    p=a.split(","); d=dict(b,am=p[0] or '062 34 157 89'); n='m'+p[0].replace(' ','')
    for x in p[1:]:
        k,v=x.split("="); d[k]=int(v); n+=k+v
    L.append((n,d))
run(L)
```

```python
import sys, json
from build import build
from haz import fix
KN = "adaLN_cond__mha_block_cached__geglu_ffn__decode_kernel"
HDR = open("adaLN_cond__mha_block_cached__geglu_ffn__decode.s.ref").read().split("; Override")[0]
EP = 0x9000
CS = 0x5100
MOD, Q, ML, H2, H1, H3, TK, SC = 0, 0x4000, 0x8000, 0xA000, 0x10000, 0x30000, 0x80000, 0x100000
L_M, L_WM, L_LP, L_Z, L_Q, L_RA, L_RB, L_RC, L_RD, L_ST, L_RF, L_X1, L_OP, L_SC = 0x40,0x50,0x60,0x80,0x100,0x400,0x400,0x400,0x400,0x200,0x400,0xC00,0x1400,0x2000
F_MOD, F_QR, F_ARR, F_Q, F_AD, F_HB, F_ML, F_CL, F_PF = 0,4,8,12,16,20,24,28,32
D = "row_mask:0xf bank_mask:0xf"
def gen(name, S=56, P=6, T1=2, TH=10**6, ts=False, wfl="nt", THR=4, am=1, dry=1, late=0, early=0, qs=0, nm=1, nh=1, sm=0, s1=0, s2=0, s3=0, hold=0, al=0, kp=0, hg=0, sy=0, rot=0, wc=0, hr=0, d1=1, d2=1, d3=1, pr=0, stg=6, tch=0, sp=0, lp=0, RK=0, J=0, out=None):
    L = []; e = L.append; lab = [0]
    NT = 512-8*S; ND = 4*NT + (32 if RK else 0); assert wc == 1 and RK <= 8 and not qs; L_DY = L_SC + (4*S*128+4095)//4096*4096; lds = L_DY + ND*128
    def nl(p): lab[0] += 1; return f"L_{p}{lab[0]}"
    def TS(k):
        if ts: e(f"s_memrealtime s[{80+2*k}:{81+2*k}]")
    def TSW(ks):
        if not ts: return
        e("s_waitcnt lgkmcnt(0)\ns_mov_b64 exec, 1\ns_lshl_b32 s3, s2, 6\ns_add_u32 s3, s3, 0x4000000\nv_mov_b32 v0, 0")
        for k in ks: e(f"v_mov_b32 v2, s{80+2*k}\nv_mov_b32 v3, s{81+2*k}\nbuffer_store_dwordx2 v[2:3], v0, s[16:19], s3 offen offset:{8*k}\ns_waitcnt vmcnt(0)")
    def srd(d, b, size): e(f"s_mov_b32 s{d}, s{b}\ns_mov_b32 s{d+1}, s{b+1}\ns_mov_b32 s{d+2}, {size}\ns_mov_b32 s{d+3}, 0x20000")
    def retry(l, sl=0):
        if sl: e(f"s_sleep {sl}")
        e(f"s_sub_u32 s79, s79, 1\ns_cbranch_scc0 {l}\ns_mov_b32 s79, 0")
    def waitflag(off, val, t, sl=1):
        l = nl("wf"); d = nl("wd")
        e(f"v_mov_b32 v{t}, 0\n{l}:\nds_read_b32 v{t+1}, v{t} offset:{off}\ns_waitcnt lgkmcnt(0)\nv_readfirstlane_b32 s3, v{t+1}\ns_cmp_ge_u32 s3, {val}\ns_cbranch_scc1 {d}")
        retry(l, sl); e(f"{d}:")
    def addflag(off, t):
        e(f"s_mov_b64 exec, 1\nv_mov_b32 v{t}, 0\nv_mov_b32 v{t+1}, 1\nds_add_u32 v{t}, v{t+1} offset:{off}\ns_mov_b64 exec, -1")
    def poll(loads, regs, t, sl=0):
        l = nl("p"); d = nl("pd"); e(f"{l}:")
        for x in loads: e(x)
        e("s_waitcnt vmcnt(0)")
        r = list(regs); e(f"v_max_u32 v{t}, v{r[0]}, v{r[1]}")
        for i in range(2, len(r), 2): e(f"v_max3_u32 v{t}, v{r[i]}, v{r[i+1]}, v{t}")
        e(f"v_cmp_eq_u32 vcc, -1, v{t}\ns_cbranch_vccz {d}"); retry(l, sl); e(f"{d}:")
    def ppoll(loads, regs, t, dep, probe=0):
        r = list(regs)
        if probe:
            l = nl("q"); d = nl("qd"); e(f"{l}:\n{loads[0]}\ns_waitcnt vmcnt(0)\nv_cmp_ne_u32 vcc, -1, v{r[0]}\ns_cbranch_vccnz {d}"); retry(l); e(f"{d}:")
        for k in range(dep-1):
            for x in loads: e(x)
            e(f"s_sleep {stg}")
        l = nl("p"); d = nl("pd"); e(f"{l}:")
        for x in loads: e(x)
        e(f"s_waitcnt vmcnt({len(loads)*(dep-1)})\nv_max_u32 v{t}, v{r[0]}, v{r[1]}")
        for i in range(2, len(r), 2): e(f"v_max3_u32 v{t}, v{r[i]}, v{r[i+1]}, v{t}")
        e(f"v_cmp_eq_u32 vcc, -1, v{t}\ns_cbranch_vccz {d}"); retry(l); e(f"{d}:")
    def pollt(loads, regs, t, sl=0):
        l = nl("p"); d = nl("pd"); e(f"{l}:")
        for x in loads: e(x)
        e("s_waitcnt vmcnt(0)")
        r = list(regs)[1::2]
        for x in r: e(f"v_xor_b32 v{x}, s46, v{x}")
        e(f"v_or_b32 v{t}, v{r[0]}, v{r[1]}")
        for i in range(2, len(r), 2): e(f"v_or3_b32 v{t}, v{r[i]}, v{r[i+1]}, v{t}")
        e(f"v_cmp_ne_u32 vcc, 0, v{t}\ns_cbranch_vccz {d}"); retry(l, sl); e(f"{d}:")
    def untag(regs):
        r = list(regs)[0::2]
        for x in r: e(f"v_and_b32 v{x+1}, s78, v{x}")
        for x in r: e(f"v_lshlrev_b32 v{x}, 16, v{x}")
    def rb(*rs):
        for r in rs: e(f"v_cvt_pk_bf16_f32 v{r}, v{r}, v{r}")
        for r in rs: e(f"v_lshlrev_b32 v{r}, 16, v{r}")
    def rows(op, rs, t):
        for sw in (16, 32):
            for i, r in enumerate(rs): e(f"v_mov_b32 v{t+i}, v{r}")
            for i, r in enumerate(rs): e(f"v_permlane{sw}_swap_b32 v{r}, v{t+i}")
            for i, r in enumerate(rs): e(f"{op} v{r}, v{r}, v{t+i}")
    def allred(op, rs, t, rors=(8,4,2,1)):
        for k in rors:
            for r in rs: e(f"{op}_dpp v{r}, v{r}, v{r} row_ror:{k} {D}")
        rows(op, rs, t)
    def tred(ys):
        for y in ys:
            for p in range(0,8,2): e(f"v_add_f32_dpp v{y+p}, v{y+p}, v{y+p} row_ror:8 row_mask:0xf bank_mask:0x3")
            for p in range(0,8,2): e(f"v_add_f32_dpp v{y+p}, v{y+p+1}, v{y+p+1} row_ror:8 row_mask:0xf bank_mask:0xc")
        for y in ys:
            for p in (0,4): e(f"v_add_f32_dpp v{y+p}, v{y+p}, v{y+p} row_shl:4 row_mask:0xf bank_mask:0x5")
            for p in (0,4): e(f"v_add_f32_dpp v{y+p}, v{y+p+2}, v{y+p+2} row_shr:4 row_mask:0xf bank_mask:0xa")
        for y in ys:
            for p in (0,4): e(f"v_add_f32_dpp v{y+p}, v{y+p}, v{y+p} quad_perm:[2,3,0,1] {D}")
        for y in ys: e(f"v_cndmask_b32 v{y}, v{y}, v{y+4}, s[76:77]")
    def unpack(dst, src, n):
        for i in range(n): e(f"v_lshlrev_b32 v{dst+2*i}, 16, v{src+i}\nv_and_b32 v{dst+2*i+1}, s78, v{src+i}")
    e(HDR + f"; @launch grid=(256,1,1) block=(512,1,1) lds={lds}")
    e(f'.amdgcn_target "amdgcn-amd-amdhsa--gfx950"\n.text\n.globl {KN}\n.p2align 8\n.type {KN},@function\n{KN}:')
    e("s_cmp_ge_u32 s2, 256\ns_cbranch_scc1 L_end"); TS(0)
    e("s_load_dwordx16 s[48:63], s[0:1], 0\ns_load_dwordx8 s[64:71], s[0:1], 64\ns_load_dwordx4 s[72:75], s[0:1], 96")
    e("v_lshrrev_b32 v1, 6, v0\nv_lshlrev_b32 v2, 2, v0\nv_mov_b32 v3, 0\nv_readfirstlane_b32 s31, v1\nds_write_b32 v2, v3")
    e("s_lshr_b32 s32, s2, 3\ns_and_b32 s33, s2, 7")
    e("s_add_u32 s35, s32, s33\ns_and_b32 s35, s35, 7")
    e("s_mov_b32 s76, 0xcccccccc\ns_mov_b32 s77, 0xcccccccc\ns_mov_b32 s78, 0xffff0000\ns_mov_b32 s79, 100000\ns_mov_b32 s27, 0x3fb8aa3b")
    e("v_and_b32 v1, 63, v0\ns_waitcnt lgkmcnt(0)")
    srd(16, 74, 0x8000000 if ts else 0x400000)
    e("s_cmp_lt_u32 s31, 4\ns_cbranch_scc1 L_stream")
    from gen2 import helper
    helper(locals())
    e("s_endpgm\nL_stream:")
    e("v_lshrrev_b32 v3, 1, v1\nv_lshlrev_b32 v3, 2, v3\nv_lshlrev_b32 v1, 4, v1\nv_add_u32 v2, 4096, v1")
    e("s_lshl_b32 s3, s32, 24\ns_add_u32 s8, s50, s3\ns_addc_u32 s9, s51, 0\ns_mov_b32 s10, 0x1000000\ns_mov_b32 s11, 0x20000")
    e("s_add_u32 s12, s52, s3\ns_addc_u32 s13, s53, 0\ns_mov_b32 s14, 0x1000000\ns_mov_b32 s15, 0x20000")
    e(f"s_mul_i32 s3, s32, 8704\ns_add_u32 s3, s3, {TK}\ns_mov_b32 s30, s3\ns_mul_i32 s4, s31, {1088*wc}\ns_add_u32 s3, s3, s4\ns_add_u32 s44, s74, s3\ns_addc_u32 s45, s75, 0")
    e(f"s_mul_i32 s3, s32, {ND*128}\ns_add_u32 s3, s3, {SC}\ns_add_u32 s20, s74, s3\ns_addc_u32 s21, s75, 0\ns_mov_b32 s22, {ND*128}\ns_mov_b32 s23, 0x20000")
    if qs: e(f"s_load_dword s46, s[74:75], {EP}")
    e("s_barrier\ns_cmp_lg_u32 s31, 0\ns_cbranch_scc1 L_noclr")
    for j in range(4): e(f"v_mov_b32 v{4+j}, -1")
    e(f"v_mov_b32 v8, 0\nv_lshrrev_b32 v9, 6, v1\nv_mul_u32_u24 v9, {CS}, v9\nv_and_b32 v10, 48, v1\nv_add_u32 v9, v9, v10\ns_mov_b32 exec_lo, {(1<<(4*nh))-1}\ns_mov_b32 exec_hi, 0")
    for b in (H2,): e(f"s_lshl_b32 s3, s2, 6\ns_add_u32 s3, s3, {b}\nbuffer_store_dwordx4 v[4:7], v9, s[16:19], s3 offen sc1")
    e(f"s_mov_b64 exec, 1\ns_lshl_b32 s3, s2, 3\ns_add_u32 s3, s3, {ML}\nbuffer_store_dwordx2 v[4:5], v1, s[16:19], s3 offen sc1")
    e("s_cmp_lg_u32 s33, 0\ns_cbranch_scc1 L_notk\ns_mov_b64 exec, 255\nv_mul_u32_u24 v10, 68, v1\nbuffer_store_dword v8, v10, s[16:19], s30 offen sc1\nL_notk:")
    e(f"s_mov_b32 exec_lo, -1\ns_lshl_b32 s3, s2, 9\ns_add_u32 s3, s3, {H1}\nbuffer_store_dwordx4 v[4:7], v1, s[16:19], s3 offen sc1\ns_mov_b64 exec, -1")
    e(f"s_lshl_b32 s3, s2, 10\ns_add_u32 s3, s3, {H3}\nbuffer_store_dwordx4 v[4:7], v1, s[16:19], s3 offen sc1")
    e("L_noclr:")
    e("s_lshl_b32 s24, s33, 2\ns_add_u32 s24, s24, s31\ns_lshl_b32 s24, s24, 13\ns_mov_b32 s36, s24")
    if isinstance(am, str):
        BT = ["ab0123456789".index(c)+8 for c in ("ab" + am.replace(" ", ""))[-12:]]; assert sorted(BT) == list(range(8, 20))
        e(f"v_and_b32 v2, 0xff, v1\nv_bfe_u32 v4, v1, 8, 1\nv_lshl_add_u32 v2, v4, {BT[0]}, v2\nv_bfe_u32 v4, v1, 9, 1\nv_lshl_add_u32 v2, v4, {BT[1]}, v2")
    def half(base, sr, h, so):
        if am == 1:
            e(f"s_and_b32 s47, s{so}, 0x6000\ns_lshr_b32 s3, s47, 3\ns_xor_b32 s47, s47, s{so}\ns_add_u32 s47, s47, s3")
            for i in range(4*h, 4*h+4): e(f"s_add_u32 s3, s47, {4096*i}\nbuffer_load_dwordx4 v[{base+4*i}:{base+4*i+3}], v1, s[{sr}:{sr+3}], s3 offen nt")
            return
        if isinstance(am, str):
            bt = BT[2:]
            if h == 0:
                if hr: e(f"s_mul_i32 s7, s32, {hr*0x40000}\ns_add_u32 s7, s7, s{so}\ns_and_b32 s7, s7, 0xffffff\ns_and_b32 s3, s{so}, 0x1000000\ns_or_b32 s7, s7, s3"); so = 7
                rs, rt = min(bt[5:8]) < 15, min(bt[8:10]) < 15
                e(f"s_lshr_b32 s4, s{so}, 18\ns_lshr_b32 s5, s{so}, 15\ns_and_b32 s47, s{so}, 0xfff00000")
                if rs and not rot & 1: e("s_add_u32 s5, s5, s4")
                if rs and not rot & 2: e("s_add_u32 s5, s5, s32")
                if rt:
                    e("s_add_u32 s6, s4, s5" + ("" if rs else "\ns_add_u32 s6, s6, s32"))
                if rot & 12: e(f"s_lshr_b32 s7, s{so}, {18 if rot & 4 else 19}\ns_lshl_b32 s7, s7, 13\ns_add_u32 s7, s7, s{so}")
                for reg, sh, bits in ((7 if rot & 12 else so, 13, bt[3:5]), (5, 0, bt[5:8]), (4, 0, bt[8:10])):
                    k = 0
                    while k < len(bits):
                        n = 1
                        while k+n < len(bits) and bits[k+n] == bits[k]+n: n += 1
                        r = 6 if reg == 4 and bits[k] < 15 else reg
                        e(f"s_bfe_u32 s3, s{r}, {hex((n << 16) + sh + k)}\ns_lshl_b32 s3, s3, {bits[k]}\ns_or_b32 s47, s47, s3"); k += n
            for i in range(4*h, 4*h+4):
                o = sum(((i >> k) & 1) << bt[k] for k in range(3))
                e(f"s_add_u32 s3, s47, {o}\nbuffer_load_dwordx4 v[{base+4*i}:{base+4*i+3}], v2, s[{sr}:{sr+3}], s3 offen nt")
            return
        if am in (8, 9):
            e(f"s_lshr_b32 s3, s{so}, 18\ns_lshr_b32 s47, s{so}, 15\ns_add_u32 s3, s3, s47\ns_add_u32 s3, s3, s32")
            if am == 8: e(f"s_and_b32 s3, s3, 3\ns_lshl_b32 s3, s3, 10\ns_and_b32 s47, s{so}, 0x3e000\ns_lshl2_add_u32 s3, s47, s3\ns_and_b32 s47, s{so}, 0xfff00000\ns_add_u32 s47, s47, s3")
            else: e(f"s_and_b32 s3, s3, 1\ns_lshl_b32 s3, s3, 11\ns_and_b32 s47, s{so}, 0x3c000\ns_lshl1_add_u32 s3, s47, s3\ns_bfe_u32 s47, s{so}, 0x1000d\ns_lshl_b32 s47, s47, 10\ns_add_u32 s3, s3, s47\ns_and_b32 s47, s{so}, 0xfff80000\ns_add_u32 s47, s47, s3")
            for i in range(4*h, 4*h+4): e(f"s_add_u32 s3, s47, {4096*i}\nbuffer_load_dwordx4 v[{base+4*i}:{base+4*i+3}], v1, s[{sr}:{sr+3}], s3 offen nt")
            return
        if am >= 5:
            lg = {5: 3, 6: 2, 7: 1}[am]; w = 0x8000 << lg
            e(f"s_lshr_b32 s3, s{so}, 18\ns_add_u32 s3, s3, s32\ns_lshl_b32 s3, s3, 12\ns_lshr_b32 s47, s{so}, {lg}\ns_add_u32 s3, s3, s47\ns_and_b32 s3, s3, 0x7fff\ns_and_b32 s47, s{so}, {hex(0xffffffff ^ (w-1))}\ns_add_u32 s47, s47, s3")
            for i in range(4*h, 4*h+4):
                if i % (8 >> lg) == 0 or i == 4*h: e(f"s_add_u32 s3, s47, {0x8000*(i >> (3-lg))}")
                e(f"buffer_load_dwordx4 v[{base+4*i}:{base+4*i+3}], v1, s[{sr}:{sr+3}], s3 offen offset:{1024*(i % (8 >> lg))} nt")
            return
        if am == 4:
            e(f"s_and_b32 s47, s{so}, 0x6000\ns_lshr_b32 s3, s47, 2\ns_xor_b32 s47, s47, s{so}\ns_add_u32 s47, s47, s3\ns_lshr_b32 s3, s{so}, 6\ns_and_b32 s3, s3, 0x1000\ns_xor_b32 s47, s47, s3")
            for i in range(4*h, 4*h+4): e(f"s_add_u32 s3, s47, {8192*(i//2)}\nbuffer_load_dwordx4 v[{base+4*i}:{base+4*i+3}], v1, s[{sr}:{sr+3}], s3 offen offset:{(i%2)*1024} nt")
            return
        if am == 2: e(f"s_lshr_b32 s47, s{so}, 5\ns_and_b32 s47, s47, 0x6000\ns_xor_b32 s47, s47, s{so}"); so = 47
        if am == 3: e(f"s_lshr_b32 s47, s{so}, 5\ns_lshl_b32 s3, s32, 13\ns_add_u32 s47, s47, s3\ns_and_b32 s47, s47, 0x6000\ns_xor_b32 s47, s47, s{so}"); so = 47
        for i in range(4*h, 4*h+4): e(f"buffer_load_dwordx4 v[{base+4*i}:{base+4*i+3}], v{1+h}, s[{sr}:{sr+3}], s{so} offen offset:{(i%4)*1024} nt")
    def hld():
        e(f"s_cmp_eq_u32 s35, 4\ns_cselect_b32 s3, {16 if hold & 1 else 0}, 0\ns_cmp_lt_u32 s32, s3\ns_cbranch_scc1 L_hold")
        e(f"s_cmp_ge_u32 s35, {2 if hold > 1 else 0}\ns_cbranch_scc1 L_nohold\nL_hold:"); waitflag(F_MOD, 4, 22, 2); e("L_nohold:")
    def pf(): e("s_cmp_lg_u32 s31, 0\ns_cbranch_scc1 L_nopf"); addflag(F_PF, 22); e("L_nopf:")
    for j in range(P):
        if hold and j == hg: hld()
        if early > 2 and j == P+2-early: pf()
        for h in range(2):
            if j: e(f"s_waitcnt vmcnt({THR})")
            half(64+32*j, 8 if kp else 12, h, 36)
        e("s_add_u32 s36, s36, 0x40000")
    if kp: e("s_mov_b32 s3, s24\ns_mov_b32 s24, s36\ns_mov_b32 s36, s3")
    if early == 2: pf()
    for h in range(2): e(f"s_waitcnt vmcnt({THR})"); half(32, 8, h, 24)
    e("v_and_b32 v4, 15, v0\nv_lshlrev_b32 v21, 4, v4\nv_and_b32 v5, 1, v0\nv_lshlrev_b32 v5, 4, v5\nv_mov_b32 v6, 0xffff\nv_lshlrev_b32 v23, v5, v6\nv_lshrrev_b32 v22, 1, v4")
    for r in range(4): e(f"v_cmp_eq_u32 vcc, {r}, v22\nv_cndmask_b32 v{4+r}, 0, v23, vcc")
    e(f"v_mov_b32 v20, 0xff800000\ns_mul_i32 s37, s31, {S*128}\ns_add_u32 s37, s37, {L_SC}\ns_add_u32 s39, s37, {128*P*kp}\ns_mov_b32 s26, 0x3db504f3\ns_mov_b32 s28, 0")
    e(f"s_cmp_eq_u32 s35, 6\ns_cselect_b32 s34, {S-RK}, {S}\ns_cselect_b32 s30, {RK*0x40000}, 0")
    if RK:
        e(f"s_cbranch_scc0 L_nrk\nv_add_u32 v22, s37, v1\ns_mov_b32 exec_lo, {hex(((1 << 8*RK) - 1) & 0xffffffff)}\ns_mov_b32 exec_hi, {hex(((1 << 8*RK) - 1) >> 32)}")
        for j in range(4): e(f"v_mov_b32 v{12+j}, 0xff7fffff")
        e(f"ds_write_b128 v22, v[12:15] offset:{128*(S-RK)}\ns_mov_b64 exec, -1\nL_nrk:")
        e(f"s_sub_u32 s46, 6, s32\ns_and_b32 s46, s46, 7\ns_lshl2_add_u32 s46, s46, s31\ns_lshl_b32 s46, s46, 13\ns_add_u32 s46, s46, {hex((((J or S-RK)-NT)*0x40000) & 0xffffffff)}")
    e("s_cmp_lg_u32 s31, 0\ns_cbranch_scc1 L_nocd\ns_waitcnt vmcnt(0) lgkmcnt(0)"); addflag(F_CL, 22)
    if qs:
        e(f"s_mul_i32 s46, s46, 0x9e3779b1\ns_add_u32 s46, s46, 0x7f4a7c15\nv_lshlrev_b32 v22, 1, v21\ns_lshl_b32 s38, s32, 9\ns_add_u32 s38, s38, {Q}")
        pollt([f"buffer_load_dwordx4 v[{12+4*k}:{15+4*k}], v22, s[16:19], s38 offen offset:{16*k} sc1" for k in range(2)], range(12,20), 23, qs-1)
        for j in range(1,4): e(f"v_mov_b32 v{12+j}, v{12+2*j}")
        e(f"ds_write_b128 v21, v[12:15] offset:{L_Q}"); addflag(F_Q, 22)
    e("L_nocd:")
    if sy: e("s_waitcnt vmcnt(0)"); addflag(F_Q, 22)
    waitflag(F_Q, 5 if sy else 1, 22)
    e(f"ds_read_b128 v[8:11], v21 offset:{L_Q}"); TS(1)
    def sched(ph):
        dyn, fin, req, go = nl("dy"), nl("fi"), nl("rq"), nl("go")
        e(f"s_waitcnt lgkmcnt(0)\ns_cmp_ge_u32 s25, s34\ns_cbranch_scc1 {dyn}")
        if J: e(f"s_cmp_eq_u32 s25, {J}\ns_cselect_b32 s3, s30, 0\ns_add_u32 s24, s24, s3")
        e(f"s_add_u32 s24, s24, 0x40000\ns_mov_b32 s40, s24\ns_add_u32 s41, s39, 128\ns_add_u32 s25, s25, 1")
        if sy > 1:
            ns = nl("ns"); e(f"s_and_b32 s3, s25, {sy-1}\ns_cbranch_scc1 {ns}\ns_add_u32 s28, s28, 4"); addflag(36, 24); waitflag(36, "s28", 24, 0); e(f"{ns}:")
        e(f"s_cmp_lt_u32 s25, s34\ns_cbranch_scc1 {go}\ns_mov_b32 s38, 0")
        if not ph: waitflag(F_ARR, 1, 22)
        e(f"s_branch {req}")
        e(f"{dyn}:")
        if ph:
            sk = nl("sk"); e(f"s_cmp_gt_u32 s25, s34\ns_cbranch_scc1 {sk}\ns_add_u32 s25, s25, 1")
            waitflag(F_ML, 1, 24)
            e(f"ds_read_b32 v25, v24 offset:{L_M}\ns_waitcnt lgkmcnt(0)\nv_mul_f32 v25, s27, v25\nv_sub_f32 v24, v20, v25\nv_exp_f32 v24, v24\nv_mov_b32 v20, v25")
            for c in range(4): e(f"v_mul_f32 v{28+c}, v{28+c}, v24")
            e(f"{sk}:")
        e(f"s_cmp_ge_u32 s38, {NT+RK}\ns_cbranch_scc1 {fin}\n" + ("s_lshl2_add_u32 s43, s38, s31" if wc else "s_mov_b32 s43, s38") + f"\ns_lshl_b32 s40, s43, 13\ns_add_u32 s40, s40, {S*0x40000}\ns_lshl_b32 s43, s43, 7")
        if RK: e(f"s_lshl_b32 s3, s38, 18\ns_add_u32 s3, s3, s46\ns_cmp_ge_u32 s38, {NT}\ns_cselect_b32 s40, s3, s40")
        e(f"s_mov_b32 s41, {L_Z}" if ph else f"s_add_u32 s41, s43, {L_DY}")
        e(f"s_add_u32 s38, s38, 1\ns_sub_u32 s29, s29, 1\ns_cmp_lg_u32 s29, 0\ns_cbranch_scc1 {go}")
        e(f"{req}:\ns_cmp_lt_u32 s38, {TH}\ns_cselect_b32 s29, {T1}, 1\ns_mov_b32 s38, s29\ns_atomic_add s38, s[44:45], {4352*ph} glc\ns_branch {go}")
        e(f"{fin}:\ns_mov_b32 s42, 1")
        if ph: e(f"s_mov_b32 s40, 0x1000000\ns_mov_b32 s43, 0x1000000")
        else: e("s_mov_b32 s8, s12\ns_mov_b32 s9, s13\ns_mov_b32 s40, s36")
        e(f"{go}:")
    e(f"s_mov_b32 s25, {1+P*kp}\ns_mov_b32 s42, 0" + (f"\n.p2align {al}" if al else "") + "\nL_A:"); sched(0)
    for h in range(2):
        e("s_waitcnt vmcnt(4)")
        for j in range(4):
            for i in range(4*h, 4*h+4): e(f"v_dot2_f32_bf16 v{12+i}, v{32+4*i+j}, v{8+j}, {'0' if j==0 else 'v%d'%(12+i)}")
        half(32, 8, h, 40)
    tred([12]); e(f"v_add_f32_dpp v12, v12, v12 quad_perm:[1,0,3,2] {D}\nv_add_u32 v21, s39, v3")
    rb(12); e("v_mul_f32 v12, s26, v12"); rb(12)
    e("ds_write_b32 v21, v12\nv_max_f32 v20, v20, v12\ns_mov_b32 s39, s41")
    if kp:
        e(f"s_cmp_lg_u32 s25, {P+2}\ns_cbranch_scc1 L_npre\nv_add_u32 v21, s37, v3")
        for j0 in range(0, P, 2):
            ys = [(12, j0), (24, j0+1)][:min(2, P-j0)]; yr = [y for y, _ in ys]
            for y, g in ys:
                for j in range(4):
                    for i in range(8): e(f"v_dot2_f32_bf16 v{y+i}, v{64+32*g+4*i+j}, v{8+j}, {'0' if j==0 else 'v%d'%(y+i)}")
            tred(yr)
            for y in yr: e(f"v_add_f32_dpp v{y}, v{y}, v{y} quad_perm:[1,0,3,2] {D}")
            rb(*yr)
            for y in yr: e(f"v_mul_f32 v{y}, s26, v{y}")
            rb(*yr)
            for y, g in ys: e(f"ds_write_b32 v21, v{y} offset:{128*g}\nv_max_f32 v20, v20, v{y}")
            e("s_waitcnt lgkmcnt(0)")
        e("L_npre:"); P = 0
    e("s_cmp_eq_u32 s42, 0\ns_cbranch_scc1 L_A"); TS(2)
    allred("v_max_f32", [20], 21, (8,4,2))
    e(f"s_lshl_b32 s3, s31, 2\nv_mov_b32 v21, s3\nds_write_b32 v21, v20 offset:{L_WM}"); addflag(F_AD, 22)
    e("v_mul_f32 v20, s27, v20\nv_add_u32 v21, s37, v3\nv_mov_b32 v18, 0")
    for c in range(4): e(f"v_mov_b32 v{28+c}, 0")
    for j in range(P): e(f"ds_read_b32 v{22+j}, v21 offset:{128*j}")
    e(f"ds_read_b32 v17, v21 offset:{128*P}\ns_waitcnt lgkmcnt(0)")
    def pexp(dst, src): e(f"v_fma_f32 v{dst}, v{src}, s27, -v20\nv_exp_f32 v{dst}, v{dst}\nv_cvt_pk_bf16_f32 v{dst}, v{dst}, v{dst}")
    def pv(p, base, i0, i1):
        def ands(i):
            for c in range(4): e(f"v_and_b32_dpp v{8+4*(i&1)+c}, v{p}, v{4+c} row_newbcast:{8*(i&1)+4*((i>>1)&1)+2*(i>>2)} {D}")
        ands(i0)
        for i in range(i0, i1):
            if i+1 < i1: ands(i+1)
            a = 8+4*(i&1); e(f"v_mfma_f32_16x16x32_bf16 v[28:31], v[{a}:{a+3}], v[{base+4*i}:{base+4*i+3}], v[28:31]")
    for j in range(P): pexp(22+j, 22+j)
    for j in range(P): pv(22+j, 64+32*j, 0, 8)
    e(f"s_mov_b32 s25, {P+1}\ns_mov_b32 s42, 0\ns_mov_b32 s24, s36\ns_add_u32 s39, s37, {128*P}\ns_mov_b32 s43, 0x1000000" + (f"\n.p2align {al}" if al else "") + "\nL_B:"); sched(1)
    e("s_waitcnt vmcnt(4)\nv_add_f32 v16, v17, v18\nv_add_u32 v21, s41, v3"); pexp(16, 16)
    e("ds_read_b32 v17, v21\nbuffer_load_dword v18, v3, s[20:23], s43 offen sc1")
    pv(16, 32, 0, 4); half(32, 12, 0, 40); e("s_waitcnt vmcnt(5)"); pv(16, 32, 4, 8); half(32, 12, 1, 40)
    e("s_mov_b32 s39, s41\ns_cmp_eq_u32 s42, 0\ns_cbranch_scc1 L_B")
    e(f"v_and_b32 v21, 15, v0\nv_lshlrev_b32 v21, 5, v21\nv_and_b32 v22, 16, v0\nv_add_u32 v21, v21, v22\ns_lshl_b32 s3, s31, 9\nv_add_u32 v21, s3, v21\ns_mov_b32 exec_hi, 0")
    e(f"ds_write_b128 v21, v[28:31] offset:{L_OP}\ns_waitcnt lgkmcnt(0)"); TS(3); e("s_barrier\ns_waitcnt vmcnt(0)")
    if ts: e("s_cmp_lg_u32 s31, 0\ns_cbranch_scc1 L_end"); TSW((0,1,2,3))
    e("s_endpgm")
    e("L_end:\ns_endpgm")
    e(f""".section .rodata,"a"
.p2align 6
.amdhsa_kernel {KN}
  .amdhsa_next_free_vgpr 256
  .amdhsa_next_free_sgpr 102
  .amdhsa_accum_offset 256
  .amdhsa_group_segment_fixed_size 0
  .amdhsa_kernarg_size 112
  .amdhsa_user_sgpr_count 2
  .amdhsa_user_sgpr_kernarg_segment_ptr 1
  .amdhsa_system_sgpr_workgroup_id_x 1
.end_amdhsa_kernel""")
    assert nm == 1 and nh == 1
    txt = "\n".join(L); a = txt.index("L_tail:"); b = txt.index("L_stream:"); pol = ["sc1", "sc0 sc1", "sc1 nt", "sc0 sc1 nt"]
    mid = "\n".join(x.replace("sc1", pol[sp if x.startswith("buffer_store") else lp]) for x in txt[a:b].split("\n"))
    open(name+".s","w").write(fix(txt[:a] + mid + txt[b:])+"\n")
    build(name+".s")
    return f"{name}.co:256:512:{lds}"
def run(specs):
    a = [gen(n, **k) for n, k in specs]
    print(" ".join(a)); print(json.dumps(["work/bench","work/pairs"]+["work/"+x.split(":")[0] for x in a]))
```
